```python
import torch

def _softmax(x, axis=-1):
    return torch.softmax(x, dim=axis)

def _gelu(x):
    return torch.nn.functional.gelu(x, approximate='tanh')

def _silu(x):
    return torch.nn.functional.silu(x)

def _sigmoid(x):
    return torch.sigmoid(x)

def _layernorm(x, axis=-1, eps=1e-05):
    m = x.mean(dim=axis, keepdim=True)
    v = x.var(dim=axis, keepdim=True, unbiased=False)
    return (x - m) / torch.sqrt(v + eps)

def _scatter_add(tgt, idx, src, axis=0):
    return tgt.clone().index_add_(axis, idx, src)

def _segment_sum(src, seg, n):
    out = torch.zeros((n,) + src.shape[1:], dtype=src.dtype)
    return out.index_add_(0, seg, src)

def _pad(x, pw):
    flat = tuple((v for pair in reversed(pw) for v in pair))
    return torch.nn.functional.pad(x, flat)
kernel_name = 'adaLN_cond__sliding_block_cached__mixer_gmlp__prompt'

def setup_inputs():

    _w = lambda a: (lambda t: t.to(torch.bfloat16) if t.is_floating_point() else t)(torch.as_tensor(a))

    def _A_setup():
        B, Sq, D = (1, 2048, 576)
        Hq, Hkv, Sk, Dh = (32, 16, 2048, 128)
        assert Hq % Hkv == 0, (Hq, Hkv)
        return {'x': _w((lambda *s: torch.randn(*s, dtype=torch.bfloat16) * 0.1)(B, Sq, D)), 'k_cache': _w((lambda *s: torch.randn(*s, dtype=torch.bfloat16) * 0.8)(B, Hkv, Sk, Dh)), 'v_cache': _w((lambda *s: torch.randn(*s, dtype=torch.bfloat16) * 1.6)(B, Hkv, Sk, Dh)), 'wq': _w((lambda *s: torch.randn(*s, dtype=torch.bfloat16) * 0.8)(D, Hq * Dh) * D ** (-0.5)), 'wo': _w((lambda *s: torch.randn(*s, dtype=torch.bfloat16) * 1.6)(Hq * Dh, D) * (Hq * Dh) ** (-0.5))}
    _A_in = _A_setup()

    def _B_setup():
        B, S, D, F = (1, 2048, 576, 4608)
        Fh = F // 2
        return {'x': _w((lambda *s: torch.randn(*s, dtype=torch.bfloat16) * 0.1)(B, S, D)), 'w_in': _w((lambda *s: torch.randn(*s, dtype=torch.bfloat16) * 1.6)(D, 2 * Fh)), 'w_sp': _w(0.01 * (lambda *s: torch.randn(*s, dtype=torch.bfloat16) * 1.6)(S, S)), 'b_sp': _w(1.0 + 0.01 * (lambda *s: torch.randn(*s, dtype=torch.bfloat16) * 0.2)(S)), 'w_out': _w((lambda *s: torch.randn(*s, dtype=torch.bfloat16) * 0.2)(Fh, D))}
    _B_in = _B_setup()
    return {'A_x': _A_in['x'], 'A_k_cache': _A_in['k_cache'], 'A_v_cache': _A_in['v_cache'], 'A_wq': _A_in['wq'], 'A_wo': _A_in['wo'], 'B_x': _B_in['x'], 'B_w_in': _B_in['w_in'], 'B_w_sp': _B_in['w_sp'], 'B_b_sp': _B_in['b_sp'], 'B_w_out': _B_in['w_out'], 'c': _w((lambda *s: torch.randn(*s, dtype=torch.bfloat16) * 0.8)(1, 576) * 8.0), 'w_mod': _w((lambda *s: torch.randn(*s, dtype=torch.bfloat16) * 0.8)(576, 6 * 576) * 576 ** (-0.5) * 8.0)}

def reference(A_x, A_k_cache, A_v_cache, A_wq, A_wo, B_x, B_w_in, B_w_sp, B_b_sp, B_w_out, c, w_mod):

    def _A_ref(x, k_cache, v_cache, wq, wo):
        B, Sq, D = x.shape
        Hq, Dh = (32, 128)
        Hkv, Sk = (k_cache.shape[1], k_cache.shape[2])
        W = min(4096, max(256, Sk // 4))
        rep = Hq // Hkv
        q = (lambda x, *d: x.permute(*d))((x @ wq).reshape(B, Sq, Hq, Dh), 0, 2, 1, 3)
        k = (lambda x, n, axis: torch.repeat_interleave(x, n, dim=axis))(k_cache[:, :, Sk - W:, :], rep, axis=1)
        v = (lambda x, n, axis: torch.repeat_interleave(x, n, dim=axis))(v_cache[:, :, Sk - W:, :], rep, axis=1)
        scores = torch.einsum('bhqd,bhkd->bhqk', q, k) * Dh ** (-0.5)
        p = _softmax(scores, axis=-1)
        o = torch.einsum('bhqk,bhkd->bhqd', p, v)
        return (lambda x, *d: x.permute(*d))(o, 0, 2, 1, 3).reshape(B, Sq, Hq * Dh) @ wo

    def _B_ref(x, w_in, w_sp, b_sp, w_out):
        B, S, D = x.shape
        F = w_in.shape[-1]
        Fh = F // 2
        z = _gelu(torch.einsum('bsd,df->bsf', x, w_in))
        z1 = z[..., :Fh].clone()
        z2 = _layernorm(z[..., Fh:], axis=-1)
        g = torch.einsum('ts,bsf->btf', w_sp, z2) + b_sp[None, :, None]
        return torch.einsum('bsf,fd->bsd', z1 * g, w_out)
    x = A_x
    mod = (_silu(c) @ w_mod).reshape(c.shape[0], 6, 1, -1)
    sa, ca, ga, sb, cb, gb = (mod[:, 0].clone(), mod[:, 1].clone(), mod[:, 2].clone(), mod[:, 3].clone(), mod[:, 4].clone(), mod[:, 5].clone())
    h = _layernorm(x, axis=-1) * (1 + ca) + sa
    x = x + ga * _A_ref(h, A_k_cache, A_v_cache, A_wq, A_wo)
    h = _layernorm(x, axis=-1) * (1 + cb) + sb
    x = x + gb * _B_ref(h, B_w_in, B_w_sp, B_b_sp, B_w_out)
    return x
```

```python
import struct
import os
FL=set(os.environ.get('FL','').split(','))
L=[]
def e(s):
    for x in s.split('\n'):
        x=x.strip()
        if x: L.append(x if x.endswith(':') else '  '+x)
def v(a,n=1): return f"v{a}" if n==1 else f"v[{a}:{a+n-1}]"
def a_(a,n=1): return f"a{a}" if n==1 else f"a[{a}:{a+n-1}]"
def s(a,n=1): return f"s{a}" if n==1 else f"s[{a}:{a+n-1}]"
def f2h(x): return hex(struct.unpack('<I',struct.pack('<f',x))[0])
X,KC,VC,WQ,WO,BX,WIN,WSPI,BSP,WOUT,CC,WMOD,OUT,DBG,WS=[8*i for i in range(15)]
_o=0
def al(n):
    global _o
    r=_o; _o+=(n+4095)//4096*4096; return r
MOD=al(3456*4); N1=al(2048*576*2); WSP=al(2048*2048*2); O=al(2048*4096*2); X1=al(2048*576*2); XC=al(2048*576*2)
ST2=al(6*2048*8); UV=al(32*2048); Z1=al(2048*2304*2); Z2=al(2048*2304*2); ST3=al(16*2048*8); Y=al(2048*2304*2)
KERN=[]
def kstart(name):
    e(f".p2align 8\n.globl {name}\n.type {name},@function\n{name}:")
def stamp(i):
    if 'T' in FL: e(f"s_memtime s[{70+2*i}:{71+2*i}]"+(f"\ns_memrealtime s[92:93]" if i==0 else ""))
def stampout(n,wg=0,wave=0):
    if 'T' not in FL: return
    lb=f"so_{len(L)}"
    e(f"s_memrealtime s[94:95]\ns_load_dwordx2 s[68:69], s[0:1], {DBG}\ns_cmp_lg_u32 s2, {wg}\ns_cbranch_scc1 {lb}\ns_cmp_lg_u32 s3, {wave}\ns_cbranch_scc1 {lb}\ns_waitcnt lgkmcnt(0)\nv_mov_b32 v1, 128")
    for i in range(1,n): e(f"s_sub_u32 s49, s{70+2*i}, s70\nv_mov_b32 v0, s49\nglobal_store_dword v1, v0, s[68:69] offset:{4*i+(64 if wave or wg else 0)}")
    e(f"s_sub_u32 s49, s94, s92\nv_mov_b32 v0, s49\nglobal_store_dword v1, v0, s[68:69] offset:{(64 if wave or wg else 0)}\n{lb}:")
def kend(name,grid,block,lds,nv,na=0):
    acc=(nv+3)//4*4
    KERN.append((name,grid,block,lds,acc+na if na else nv,acc))
def ldptr(pairs):
    for d,slot in pairs: e(f"s_load_dwordx2 {s(d,2)}, s[0:1], {slot}")
def srd(d,p,off,size,sreg=None):
    e(f"s_add_u32 {s(d)}, {s(p)}, {off}\ns_addc_u32 {s(d+1)}, {s(p+1)}, 0")
    if sreg is not None: e(f"s_add_u32 {s(d)}, {s(d)}, {s(sreg)}\ns_addc_u32 {s(d+1)}, {s(d+1)}, 0")
    e(f"s_mov_b32 {s(d+2)}, {size}\ns_mov_b32 {s(d+3)}, 0x20000")
def waveid(sd,vt):
    e(f"v_lshrrev_b32 {v(vt)}, 6, v0\ns_nop 0\nv_readfirstlane_b32 {s(sd)}, {v(vt)}")
def unpack(dlo,dhi,src):
    e(f"v_lshlrev_b32 {v(dlo)}, 16, {v(src)}\nv_and_b32 {v(dhi)}, 0xffff0000, {v(src)}")
def rbf(d,src):
    e(f"v_cvt_pk_bf16_f32 {v(d)}, {v(src)}, {v(src)}\nv_lshlrev_b32 {v(d)}, 16, {v(d)}")
def xred(r,t,op="v_add_f32",w16=True):
    for sw in (["v_permlane16_swap_b32"] if w16 else [])+["v_permlane32_swap_b32"]:
        for a,b in zip(r,t): e(f"v_mov_b32 {v(b)}, {v(a)}")
        e("s_nop 1")
        for a,b in zip(r,t): e(f"{sw} {v(a)}, {v(b)}")
        e("s_nop 1")
        for a,b in zip(r,t): e(f"{op} {v(a)}, {v(a)}, {v(b)}")
def gemv(nvec,wsrd,ldw,tag):
    for q in range(nvec):
        for j in range(8): e(f"v_mov_b32 {v(80+8*q+j)}, 0")
    for i in range(9):
        e(f"s_waitcnt vmcnt({8-i})")
        for j in range(4):
            unpack(4,5,20+4*i+j)
            for q in range(nvec):
                e(f"v_fmac_f32 {v(80+8*q+2*j)}, v4, {v(60+9*q+i)}\nv_fmac_f32 {v(81+8*q+2*j)}, v5, {v(60+9*q+i)}")
    for ror in (4,8):
        e("s_nop 1")
        for j in range(8*nvec): e(f"v_add_f32_dpp {v(80+j)}, {v(80+j)}, {v(80+j)} row_ror:{ror} row_mask:0xf bank_mask:0xf")
    e("v_lshrrev_b32 v4, 4, v0\nv_lshlrev_b32 v4, 7, v4\nv_and_b32 v5, 3, v0\nv_lshl_add_u32 v4, v5, 5, v4")
    for q in range(nvec):
        e(f"ds_write_b128 v4, {v(80+8*q,4)} offset:{2048*q}\nds_write_b128 v4, {v(84+8*q,4)} offset:{2048*q+16}")
    e("s_waitcnt lgkmcnt(0)\ns_barrier")
    e("v_bfe_u32 v4, v0, 5, 1\nv_lshlrev_b32 v4, 11, v4\nv_and_b32 v5, 31, v0\nv_lshl_add_u32 v4, v5, 2, v4")
    for i in range(16): e(f"ds_read_b32 {v(20+i)}, v4 offset:{128*i}")
    e("s_waitcnt lgkmcnt(0)")
    for st in (8,4,2,1):
        for i in range(st): e(f"v_add_f32 {v(20+i)}, {v(20+i)}, {v(20+i+st)}")
    e("v_mov_b32 v2, v20")
def gemv_loads(wsrd,ldw):
    e(f"v_lshrrev_b32 v3, 2, v0\nv_mul_u32_u24 v4, {ldw}, v3\nv_and_b32 v5, 3, v0\nv_lshl_add_u32 v4, v5, 4, v4")
    for i in range(9):
        e(f"s_mov_b32 s40, {64*i*ldw}\nbuffer_load_dwordx4 {v(20+4*i,4)}, v4, {s(wsrd,4)}, s40 offen")
def finish(path,hdr):
    out=hdr
    for i,x in enumerate(L):
        if 'buffer_store' in x and 'sc1' not in x:
            if 'dwordx4' in x and 'W0' not in FL: L[i]+=' sc1'
            if 'W2' in FL: L[i]+=' sc0 sc1'
            if 'W3' in FL: L[i]+=' nt'
    for n,g,b,l,nv,acc in KERN: out+=f"; @launch kernel={n} grid=({g},1,1) block=({b},1,1) lds={l}\n"
    out+='.amdgcn_target "amdgcn-amd-amdhsa--gfx950"\n.text\n'+'\n'.join(L)+'\n.section .rodata,"a"\n'
    for n,g,b,l,nv,acc in KERN:
        out+=f""".p2align 6
.amdhsa_kernel {n}
  .amdhsa_next_free_vgpr {nv}
  .amdhsa_next_free_sgpr 96
  .amdhsa_accum_offset {acc}
  .amdhsa_group_segment_fixed_size 0
  .amdhsa_kernarg_size 120
  .amdhsa_user_sgpr_count 2
  .amdhsa_user_sgpr_kernarg_segment_ptr 1
  .amdhsa_system_sgpr_workgroup_id_x 1
.end_amdhsa_kernel
"""
    open(path,'w').write(out)
```

```python
from base import *
class G:
    def __init__(g,tag,NT,nst,R,D,ldw,mode,KS=1,unroll=False):
        MT=2; g.tag,g.MT,g.NT,g.nst,g.R,g.D,g.ldw,g.mode,g.KS=tag,MT,NT,nst,R,D,ldw,mode,KS
        g.BK=64*KS; g.RB=NT*32; g.SB=g.BK*g.RB; g.WB=g.SB//4; g.nW=(g.WB+1023)//1024; g.nA=4
        g.ACC=20; g.WF=20+MT*NT*4; g.FREE=g.WF+8*NT; g.spw=65536//g.SB; g.nwin=(R+g.spw-1)//g.spw
        g.lds=R*g.SB; g.na=R*g.nA*4; g.cnt=0 if unroll else (nst-2)//R; g.Q=[]
        assert g.nwin<=3 and g.nW<=6
    def acc(g,m,t): return g.ACC+(m*g.NT+t)*4
    def soff(g): return f"s_add_u32 s64, s65, s66\ns_mul_i32 s45, s64, {4096*g.KS}\ns_mul_i32 s44, s64, {g.SB if g.mode=='lin' else g.BK*g.ldw}"
    def setup(g,mul,add=None):
        S=g.SBK=9 if g.nst%9==0 else 8
        if 'S16' in FL: S=g.SBK=2*S if g.nst>9 else S
        x=2 if S>9 else 1
        e(f"s_lshr_b32 s64, s2, 3\ns_and_b32 s66, s64, 7\ns_lshr_b32 s64, s64, 3\ns_mul_i32 s64, s64, {mul}\ns_add_u32 s66, s66, s64\ns_mul_i32 s66, s66, {x if 'ROT' in FL else 0}\ns_cmp_ge_u32 s66, {S}\ns_cselect_b32 s64, {S}, 0\ns_sub_u32 s66, s66, s64\ns_mov_b32 s65, 0\ns_mov_b32 s67, 0\n"+g.soff())
        if 'C1' in FL: e(cpf("a0"))
        e("v_and_b32 v0, 63, v0\nv_lshlrev_b32 v1, 4, v0")
        e(f"s_mul_i32 s46, s3, {g.WB}")
        if g.KS==2: e("s_lshr_b32 s51, s3, 1\ns_mul_i32 s48, s51, 5120\nv_add_u32 v16, s48, v1\nv_xor_b32 v17, 0x400, v16")
        cpr=g.RB//16
        for i in range(g.nW):
            d=2+i
            if g.mode=='lin': e(f"s_add_u32 s48, s46, {i*1024}\nv_add_u32 {v(d)}, s48, v1")
            else:
                mg=(65536+cpr-1)//cpr
                assert all((c*mg)>>16==c//cpr for c in range(g.BK*cpr+64))
                e(f"s_lshr_b32 s48, s46, 4\ns_add_u32 s48, s48, {i*64}\nv_add_u32 v14, s48, v0\nv_mul_u32_u24 v15, {mg}, v14\nv_lshrrev_b32 v15, 16, v15")
                e(f"v_mul_u32_u24 {v(d)}, {cpr}, v15\nv_sub_u32 v14, v14, {v(d)}")
                if g.NT==6: e(f"v_bfe_u32 {v(d)}, v15, 2, 1\nv_lshlrev_b32 {v(d)}, 1, {v(d)}\nv_xor_b32 v14, v14, {v(d)}")
                e(f"v_mul_u32_u24 {v(d)}, {g.ldw}, v15\nv_lshl_add_u32 {v(d)}, v14, 4, {v(d)}")
    def setup2(g):
        if g.mode=='lin':
            e("v_lshrrev_b32 v14, 5, v0\nv_lshlrev_b32 v8, 9, v14\nv_and_b32 v14, 3, v0\nv_lshl_add_u32 v8, v14, 6, v8\nv_bfe_u32 v14, v0, 2, 2\nv_lshl_add_u32 v8, v14, 4, v8\nv_bfe_u32 v14, v0, 4, 1\nv_lshl_add_u32 v8, v14, 3, v8")
        else:
            e(f"v_lshrrev_b32 v14, 2, v0\nv_mul_u32_u24 v8, {g.RB}, v14\nv_and_b32 v14, 3, v0\nv_lshl_add_u32 v8, v14, 3, v8")
        if g.KS==2: e(f"s_mul_i32 s48, s51, {64*g.RB}\nv_add_u32 v8, s48, v8")
        if g.NT==6:
            e("v_bfe_u32 v14, v0, 4, 1\nv_lshlrev_b32 v14, 5, v14\nv_add_u32 v11, 32, v8\nv_sub_u32 v11, v11, v14\nv_add_u32 v8, v8, v14")
        for w in range(1,g.nwin):
            e(f"v_add_u32 {v(8+w)}, {w*g.spw*g.SB}, v8")
            if g.NT==6: e(f"v_add_u32 {v(11+w)}, {w*g.spw*g.SB}, v11")
    def memops(g,st,lp=0):
        slot=st%g.R; A=[]; W=[]
        for i in range(4):
            ad,off=("v1",1024*i) if g.KS==1 else (v(16+i%2),2048*(i//2))
            A.append(f"buffer_load_dwordx4 {a_((slot*4+i)*4,4)}, {ad}, s[16:19], s45 offen offset:{off}")
        S=g.SBK
        A[-1]+=f"\ns_add_u32 s66, s66, 1\ns_cmp_eq_u32 s66, {S}\ns_cselect_b32 s66, 0, s66\ns_add_u32 s67, s67, 1\ns_cmp_eq_u32 s67, {S}\ns_cselect_b32 s67, 0, s67\ns_cselect_b32 s64, {S}, 0\ns_add_u32 s65, s65, s64\n"+g.soff()
        for i in range(g.nW):
            half=(i+1)*1024>g.WB
            W.append(f"s_add_u32 m0, s46, {slot*g.SB+i*1024}\n"+("s_mov_b32 exec_hi, 0\n" if half else "s_nop 0\n")+f"buffer_load_dwordx4 {v(2+i)}, s[12:15], s44 offen lds"+("\ns_mov_b32 exec_hi, -1" if half else ""))
        if 'WRAP' in FL: A[-1]+='\ns_and_b32 s45, s45, 0x7fff'; W[-1]+='\ns_and_b32 s44, s44, 0x1ffff'
        if 'NT' in FL: A=[x.replace(' offen',' offen nt') if 0 else x.split('\n')[0]+' nt\n'+'\n'.join(x.split('\n')[1:]) for x in A]; W=[x.replace(' lds',' nt lds') for x in W]
        if 'SC' in FL: A=[x.split('\n')[0]+' sc1\n'+'\n'.join(x.split('\n')[1:]) for x in A]; W=[x.replace(' lds',' sc1 lds') for x in W]
        if lp and 'NOA' in FL: A=[]
        if lp and 'NOW' in FL: W=[]
        return [(o,st) for o in W+A]
    def op(g,o): e(o[0]); g.Q.append(o[1])
    def wait(g,st):
        idx=[i for i,x in enumerate(g.Q) if x<=st]
        if idx: e(f"s_waitcnt vmcnt({min(63,len(g.Q)-1-idx[-1])})"); del g.Q[:idx[-1]+1]
    def reads(g,slot,j,buf):
        r=[]; w=slot//g.spw; b=(slot%g.spw)*g.SB+j*32*g.RB
        for t in range(g.NT):
            for u in range(2):
                if g.mode=='lin': ad,off=8+w,b+t*1024+u*256
                elif g.NT==6: ad,off=(8 if t%2==0 else 11)+w,b+u*16*g.RB+(t&~1)*32
                else: ad,off=8+w,b+u*16*g.RB+t*32
                r.append(f"ds_read_b64_tr_b16 {v(g.WF+buf*4*g.NT+4*t+2*u,2)}, {v(ad)} offset:{off}")
        return r
    def prologue(g):
        stamp(0)
        for st in range(g.D-1):
            for o in g.memops(st): g.op(o)
        g.setup2()
        for i in range(g.MT*g.NT*4): e(f"v_mov_b32 {v(g.ACC+i)}, 0")
        g.wait(0); e("s_barrier"); stamp(1); e('s_waitcnt lgkmcnt(0)' if 'T' in FL else '')
        for r in g.reads(0,0,0): e(r)
        g.mo=g.memops(g.D-1); hh=(len(g.mo)+1)//2
        for o in g.mo[:hh]: g.op(o)
        g.mo=g.mo[hh:]
    def stage(g,i,tail):
        MT,NT,R=g.MT,g.NT,g.R; h=(NT+1)//2; nm=MT*NT
        for j in range(2):
            rd=g.reads(i%R,1,1) if j==0 else g.reads((i+1)%R,0,0)
            if j==0: mo=g.mo; g.mo=[]
            else:
                mo=[]
                if tail and i==g.nst-1: rd=[]
                else:
                    g.wait(i+1); e("s_barrier")
                    if not tail or i+g.D<g.nst:
                        mo=g.memops(i+g.D,1); hh=(len(mo)+1)//2; g.mo=mo[hh:]; mo=mo[:hh]
            if 'NORD' in FL: rd=[]
            issued=0; k=0; gap=max(1,nm//max(1,len(mo)))
            for t in range(NT):
                if t==0: e(f"s_waitcnt lgkmcnt({min(15,2*(NT-h))})")
                if t==h: e(f"s_waitcnt lgkmcnt({min(15,issued)})")
                for m in range(MT):
                    if not "NOMF" in FL: e(f"v_mfma_f32_16x16x32_bf16 {v(g.acc(m,t),4)}, {v(g.WF+j*4*NT+4*t,4)}, {a_(((i%R)*4+j*MT+m)*4,4)}, {v(g.acc(m,t),4)}")
                    k+=1
                    want=min(len(rd),(len(rd)*k+nm-3)//(nm-2))
                    while issued<want: e(rd[issued]); issued+=1
                    if mo and k%gap==1%gap: g.op(mo.pop(0))
            for o in mo: g.op(o)
    def loop(g,late=[],lst=None):
        R=g.R
        if 'C2' in FL and g.tag!='k5': late=[cpf(a_(g.na),f"k{int(g.tag[1])+1}_kernel",True)]+late; g.na+=4
        if g.cnt:
            e(f"s_mov_b32 s47, {g.cnt}\n{g.tag}_loop:")
            for i in range(R): g.stage(i,False)
            e(f"s_sub_u32 s47, s47, 1\ns_cmp_lg_u32 s47, 0\ns_cbranch_scc1 {g.tag}_loop")
            sh=(g.cnt-1)*R; g.Q=[x+sh for x in g.Q]; g.mo=[(o,x+sh) for o,x in g.mo]
        if lst is None: lst=g.cnt*R
        for i in range(g.cnt*R,g.nst):
            if i==lst: g.mo=g.mo+[(o,999) for o in late]
            g.stage(i,True)
        stamp(2)
        if g.KS==2:
            e("s_mul_i32 s48, s3, 6144\nv_add_u32 v16, s48, v1\ns_xor_b32 s48, s3, 2\ns_mul_i32 s48, s48, 6144\nv_add_u32 v17, s48, v1")
            g.wait(998); e("s_barrier\ns_nop 4")
            for t in range(6): e(f"ds_write_b128 v16, {v(g.acc(1,t),4)} offset:{1024*t}")
            e("s_waitcnt lgkmcnt(0)\ns_barrier")
            for t in range(6): e(f"ds_read_b128 {v(g.acc(1,t),4)}, v17 offset:{1024*t}")
            e("s_waitcnt vmcnt(0) lgkmcnt(0)")
            for i in range(24): e(f"v_add_f32 {v(g.ACC+i)}, {v(g.ACC+i)}, {v(g.ACC+24+i)}")
        else: e("s_waitcnt vmcnt(0) lgkmcnt(0)\ns_nop 7")
def map_8x3():
    e("s_and_b32 s32, s2, 7\ns_lshr_b32 s33, s2, 3\ns_and_b32 s30, s33, 7\ns_lshr_b32 s31, s33, 3\ns_lshr_b32 s33, s32, 1\ns_lshl_b32 s33, s33, 3\ns_add_u32 s30, s30, s33\ns_and_b32 s32, s32, 1\ns_mul_i32 s32, s32, 3\ns_add_u32 s31, s31, s32")
def map_8x4():
    e("s_and_b32 s32, s2, 7\ns_bfe_u32 s33, s2, 0x50003\ns_and_b32 s30, s33, 7\ns_lshr_b32 s31, s33, 3\ns_and_b32 s33, s32, 1\ns_lshl_b32 s33, s33, 3\ns_add_u32 s30, s30, s33\ns_lshr_b32 s32, s32, 1\ns_lshl_b32 s32, s32, 2\ns_add_u32 s31, s31, s32")
def modvec(d,seg,nt):
    return [f"s_mov_b32 s48, {seg*2304}\nbuffer_load_dwordx4 {v(d+4*t,4)}, v19, s[24:27], s48 offen offset:{64*t}" for t in range(nt)]

def k2():
    n="k2_kernel"; kstart(n); g=G("k2",6,32,*((6,5) if 'R6' in FL else (5,4)),192 if 'LD' in FL else 1152,'str',2); F=g.FREE
    e("s_cmp_ge_u32 s2, 240\ns_cbranch_scc1 k2_end")
    ldptr([(4,X),(6,WO),(8,WIN),(10,WS)]); waveid(3,1)
    e("s_cmp_ge_u32 s2, 192\ns_cbranch_scc1 k2_uv")
    map_8x3()
    e("s_and_b32 s33, s3, 1\ns_lshl_b32 s34, s30, 1\ns_add_u32 s33, s33, s34\ns_lshl_b32 s34, s33, 1\ns_lshr_b32 s35, s3, 1\ns_add_u32 s34, s34, s35\ns_mul_i32 s35, s31, 192\ns_sub_u32 s36, 4718592, s35\ns_lshl_b32 s37, s33, 18\ns_mul_i32 s38, s34, 18432\ns_add_u32 s38, s38, s35\ns_lshl_b32 s39, s35, 1\ns_waitcnt lgkmcnt(0)")
    srd(12,6,0,"s36",35); srd(16,10,O,262144,37); srd(20,4,0,15*1152+192,38); srd(24,10,MOD,13824,39)
    g.setup(3)
    e("v_and_b32 v18, 15, v0\nv_mul_u32_u24 v18, 1152, v18\nv_lshrrev_b32 v19, 4, v0\nv_lshl_add_u32 v18, v19, 3, v18\nv_lshlrev_b32 v19, 4, v19")
    g.prologue(); g.loop([f"buffer_load_dwordx2 {v(F+2*t,2)}, v18, s[20:23], 0 offen offset:{32*t}" for t in range(6)]+modvec(F+12,2,6)+modvec(F+36,4,6))
    e("s_mul_i32 s35, s34, 6\ns_add_u32 s35, s35, s31\ns_mul_i32 s35, s35, 3072\ns_lshr_b32 s36, s34, 1\ns_mul_i32 s36, s36, 36864\ns_mul_i32 s37, s31, 6144\ns_add_u32 s36, s36, s37\ns_and_b32 s37, s34, 1\ns_lshl_b32 s37, s37, 10\ns_add_u32 s36, s36, s37\ns_lshl_b32 s37, s31, 14\ns_lshl_b32 s38, s34, 7\ns_add_u32 s37, s37, s38")
    srd(12,10,X1,3072,35); srd(16,10,XC,5120,36); srd(20,10,ST2,128,37)
    e("v_mov_b32 v2, 0\nv_mov_b32 v3, 0"); W=g.WF
    for t in range(6):
        A=g.acc(0,t)
        for h in range(2):
            unpack(4,5,F+2*t+h)
            e(f"v_fmac_f32 v4, {v(A+2*h)}, {v(F+12+4*t+2*h)}\nv_fmac_f32 v5, {v(A+2*h+1)}, {v(F+13+4*t+2*h)}\nv_cvt_pk_bf16_f32 {v(W+2*t+h)}, v4, v5")
            unpack(4,5,W+2*t+h)
            e(f"v_add_f32 v2, v2, v4\nv_fmac_f32 v3, v4, v4\nv_add_f32 v2, v2, v5\nv_fmac_f32 v3, v5, v5")
            e(f"v_mul_f32 v4, v4, {v(F+36+4*t+2*h)}\nv_mul_f32 v5, v5, {v(F+37+4*t+2*h)}\nv_cvt_pk_bf16_f32 {v(W+12+2*t+h)}, v4, v5")
        if t%2:
            p=t//2
            e(f"s_mov_b32 s48, {2048*p}\nbuffer_store_dwordx4 {v(W+4*p,4)}, v1, s[12:15], 0 offen offset:{1024*p}\nbuffer_store_dwordx4 {v(W+12+4*p,4)}, v1, s[16:19], s48 offen")
    xred([2,3],[4,5])
    e("v_lshlrev_b32 v4, 3, v0\nbuffer_store_dwordx2 v[2:3], v4, s[20:23], 0 offen")
    stamp(3); stampout(4); e("s_endpgm")
    e("k2_uv:\ns_sub_u32 s30, s2, 192\ns_mul_i32 s30, s30, 3\ns_add_u32 s41, s30, 3\ns_waitcnt lgkmcnt(0)")
    srd(16,10,MOD,13824); srd(20,10,UV,65536)
    e("v_and_b32 v6, 0xfc, v0")
    for q,seg in enumerate((4,3)):
        for i in range(9): e(f"s_mov_b32 s48, {seg*2304}\nbuffer_load_dword {v(60+9*q+i)}, v6, s[16:19], s48 offen offset:{256*i}")
    e("k2_uvl:\ns_lshl_b32 s31, s30, 6\ns_sub_u32 s32, 5308416, s31")
    srd(12,8,0,"s32",31)
    gemv_loads(12,9216); gemv(2,12,9216,"k2")
    assert all((c*3641)>>19==c//144 for c in range(4608))
    e("s_lshl_b32 s31, s30, 5\nv_and_b32 v4, 31, v0\nv_add_u32 v4, s31, v4\nv_mul_u32_u24 v5, 3641, v4\nv_lshrrev_b32 v5, 19, v5\nv_mul_u32_u24 v5, 1472, v5\nv_lshl_add_u32 v4, v4, 2, v5\nv_bfe_u32 v5, v0, 5, 1\nv_mul_u32_u24 v5, 576, v5\nv_add_u32 v4, v4, v5")
    e("buffer_store_dword v2, v4, s[20:23], 0 offen\ns_waitcnt vmcnt(0)\ns_barrier\ns_add_u32 s30, s30, 1\ns_cmp_lt_u32 s30, s41\ns_cbranch_scc1 k2_uvl")
    e("k2_end:\ns_endpgm")
    kend(n,240,256,g.lds,max(F+60,100),g.na)

def k5():
    n="k5_kernel"; kstart(n); g=G("k5",6,18,5,4,1152,'str',2); F=g.FREE
    e("s_cmp_ge_u32 s2, 192\ns_cbranch_scc1 k5_end")
    ldptr([(4,OUT),(6,WOUT),(10,WS)]); waveid(3,1)
    map_8x3()
    e("s_and_b32 s33, s3, 1\ns_lshl_b32 s34, s30, 1\ns_add_u32 s33, s33, s34\ns_lshl_b32 s34, s33, 1\ns_lshr_b32 s35, s3, 1\ns_add_u32 s34, s34, s35\ns_mul_i32 s35, s31, 192\ns_sub_u32 s36, 2654208, s35\ns_mul_i32 s37, s33, 147456\ns_mul_i32 s38, s34, 18432\ns_add_u32 s38, s38, s35\ns_lshl_b32 s39, s35, 1\ns_mul_i32 s40, s34, 6\ns_add_u32 s40, s40, s31\ns_mul_i32 s40, s40, 3072\ns_waitcnt lgkmcnt(0)")
    srd(12,6,0,"s36",35); srd(16,10,Y,147456,37); srd(20,4,0,15*1152+192,38); srd(24,10,MOD,13824,39); srd(52,10,X1,3072,40)
    g.setup(3)
    e("v_and_b32 v18, 15, v0\nv_mul_u32_u24 v18, 1152, v18\nv_lshrrev_b32 v19, 4, v0\nv_lshl_add_u32 v18, v19, 3, v18\nv_lshlrev_b32 v19, 4, v19")
    g.prologue(); g.loop([f"buffer_load_dwordx4 {v(F+4*p,4)}, v1, s[52:55], 0 offen offset:{1024*p}" for p in range(3)]+modvec(F+12,5,6))
    for t in range(6):
        A=g.acc(0,t)
        for h in range(2):
            unpack(4,5,F+2*t+h)
            e(f"v_fmac_f32 v4, {v(A+2*h)}, {v(F+12+4*t+2*h)}\nv_fmac_f32 v5, {v(A+2*h+1)}, {v(F+13+4*t+2*h)}\nv_cvt_pk_bf16_f32 {v(g.WF+2*t+h)}, v4, v5")
        e(f"buffer_store_dwordx2 {v(g.WF+2*t,2)}, v18, s[20:23], 0 offen offset:{32*t}")
    stamp(3); stampout(4)
    e("k5_end:\ns_endpgm")
    kend(n,192,256,g.lds,F+36,g.na)

def k4():
    n="k4_kernel"; kstart(n); g=G("k4",9,32,6,5,0,'lin'); F=g.FREE
    e("s_cmp_ge_u32 s2, 256\ns_cbranch_scc1 k4_end")
    ldptr([(4,BSP),(10,WS)]); waveid(3,1)
    map_8x4()
    e("s_lshl_b32 s34, s30, 2\ns_add_u32 s34, s34, s3\ns_mul_i32 s35, s31, 589824\ns_lshl_b32 s37, s34, 17\ns_mul_i32 s38, s34, 9216\ns_add_u32 s38, s38, s35\ns_lshl_b32 s39, s34, 6")
    e("s_mul_i32 s40, s34, 147456\ns_mul_i32 s41, s31, 9\ns_lshr_b32 s41, s41, 1\ns_lshl_b32 s41, s41, 11\ns_add_u32 s40, s40, s41\ns_waitcnt lgkmcnt(0)")
    srd(12,10,Z2,589824,35); srd(16,10,WSP,131072,37); srd(20,10,Z1,9216,38); srd(24,4,0,64,39); srd(52,10,Y,10240,40)
    g.setup(2)
    e("v_and_b32 v18, 15, v0\nv_lshlrev_b32 v18, 1, v18")
    g.prologue(); g.loop([f"buffer_load_ushort {v(F+36+m)}, v18, s[24:27], 0 offen offset:{32*m}" for m in range(2)]+[f"s_mov_b32 s48, {1024*t}\nbuffer_load_dwordx4 {v(F+4*t,4)}, v1, s[20:23], s48 offen" for t in range(9)])
    W=g.WF
    for m in range(2):
        e(f"v_lshlrev_b32 {v(F+36+m)}, 16, {v(F+36+m)}")
        for t in range(9):
            A=g.acc(m,t)
            for h in range(2):
                unpack(4,5,F+4*t+2*m+h)
                e(f"v_add_f32 v6, {v(A+2*h)}, {v(F+36+m)}\nv_add_f32 v7, {v(A+2*h+1)}, {v(F+36+m)}\nv_mul_f32 v4, v4, v6\nv_mul_f32 v5, v5, v7\nv_cvt_pk_bf16_f32 {v(W+20*m+2*t+h)}, v4, v5")
    e("s_bitcmp1_b32 s31, 0\ns_cbranch_scc1 k4_odd")
    for par in range(2):
        for m in range(2):
            for p in range(4): e(f"s_mov_b32 s48, {2048*(p+par)}\nbuffer_store_dwordx4 {v(W+20*m+4*p+2*par,4)}, v1, s[52:55], s48 offen offset:{1024*m}")
            e(f"s_mov_b32 s48, {0 if par else 8192}\nbuffer_store_dwordx2 {v(W+20*m+(0 if par else 16),2)}, v1, s[52:55], s48 offen offset:{1024*m+8*par}")
        stamp(3); stampout(4)
        e("s_endpgm\nk4_odd:" if par==0 else "k4_end:\ns_endpgm")
    kend(n,256,256,g.lds,F+38,g.na)

def k3():
    n="k3_kernel"; kstart(n); g=G("k3",9,9,4,3,9216,'str',1,True); F=g.FREE; W=g.WF
    e("s_cmp_ge_u32 s2, 512\ns_cbranch_scc1 k3_end")
    ldptr([(6,WIN),(10,WS)]); waveid(3,1)
    map_8x4()
    e("s_cmp_lt_u32 s2, 256\ns_cselect_b32 s42, 16, 0\ns_cbranch_scc0 k3_lo\ns_setprio 2\nk3_lo:\ns_add_u32 s43, s42, s31")
    e("s_lshl_b32 s34, s30, 2\ns_add_u32 s34, s34, s3\ns_mul_i32 s35, s43, 288\ns_sub_u32 s36, 5308416, s35\ns_mul_i32 s37, s34, 36864\ns_lshl_b32 s38, s34, 8\ns_lshl_b32 s39, s43, 11")
    e(f"s_mul_i32 s40, s43, 589824\ns_mul_i32 s41, s34, 9216\ns_add_u32 s40, s40, s41\ns_waitcnt lgkmcnt(0)")
    assert Z2==Z1+16*589824
    srd(12,6,0,"s36",35); srd(16,10,XC,36864,37); srd(20,10,ST2,6*16384,38); srd(24,10,UV,1152,39); srd(52,10,Z1,9216,40)
    srd(56,10,ST3,16*16384,38)
    g.setup(1)
    e("v_and_b32 v7, 15, v0\nv_lshlrev_b32 v7, 3, v7")
    late=[f"s_mov_b32 s48, {16384*c}\nbuffer_load_dwordx2 {v(F+12*m+2*c,2)}, v7, s[20:23], s48 offen offset:{128*m}" for m in range(2) for c in range(6)]
    late+=[f"s_mov_b32 m0, {g.lds}\ns_nop 0\nbuffer_load_dwordx4 v1, s[24:27], 0 offen offset:{1024*q} lds" for q in range(2)]
    g.prologue(); g.loop(late,6)
    e(f"v_lshrrev_b32 v15, 4, v0\nv_lshlrev_b32 v15, 4, v15\nv_add_u32 v15, {g.lds}, v15")
    for q in range(2):
        for t in range(9): e(f"ds_read_b128 {v(W+36*q+4*t,4)}, v15 offset:{576*q+64*t}")
    def fin(sm,sq,n):
        e(f"v_mul_f32 {v(sm)}, {f2h(-1/n)}, {v(sm)}\nv_mov_b32 v4, {f2h(1e-5)}\nv_fmamk_f32 {v(sq)}, {v(sq)}, {f2h(1/n)}, v4\nv_fma_f32 {v(sq)}, -{v(sm)}, {v(sm)}, {v(sq)}\nv_max_f32 {v(sq)}, {v(sq)}, v4\nv_rsq_f32 {v(sq)}, {v(sq)}\ns_nop 0\nv_mul_f32 {v(sm)}, {v(sm)}, {v(sq)}")
    for m in range(2):
        for c in range(1,6): e(f"v_add_f32 {v(F+12*m)}, {v(F+12*m)}, {v(F+12*m+2*c)}\nv_add_f32 {v(F+12*m+1)}, {v(F+12*m+1)}, {v(F+12*m+2*c+1)}")
        fin(F+12*m,F+12*m+1,576)
    k0=-2*0.7978845608028654*1.4426950408889634
    e(f"s_waitcnt lgkmcnt(0)\nv_mov_b32 v14, {f2h(k0)}")
    T=F+2
    for m in range(2):
        for t in range(9):
            A=g.acc(m,t)
            for j in range(4): e(f"v_fma_f32 {v(T+j)}, {v(F+12*m)}, {v(W+4*t+j)}, {v(W+36+4*t+j)}")
            for j in range(4): e(f"v_fma_f32 {v(A+j)}, {v(A+j)}, {v(F+12*m+1)}, {v(T+j)}")
            for j in range(4): e(f"v_mul_f32 {v(T+j)}, {v(A+j)}, {v(A+j)}")
            for j in range(4): e(f"v_fmamk_f32 {v(T+j)}, {v(T+j)}, {f2h(k0*0.044715)}, v14")
            for j in range(4): e(f"v_mul_f32 {v(T+j)}, {v(T+j)}, {v(A+j)}")
            for j in range(4): e(f"v_exp_f32 {v(T+j)}, {v(T+j)}")
            for j in range(4): e(f"v_add_f32 {v(T+j)}, 1.0, {v(T+j)}")
            for j in range(4): e(f"v_rcp_f32 {v(T+j)}, {v(T+j)}")
            for j in range(4): e(f"v_mul_f32 {v(A+j)}, {v(A+j)}, {v(T+j)}")
    stamp(3); stamp(4)
    e("s_cmp_lt_u32 s2, 256\ns_cbranch_scc1 k3_z2\nv_mov_b32 v6, v1\ns_branch k3_st\nk3_z2:")
    for m in range(2):
        e(f"v_mov_b32 {v(F+2*m)}, 0\nv_mov_b32 {v(F+2*m+1)}, 0")
        for i in range(36): e(f"v_add_f32 {v(F+2*m)}, {v(F+2*m)}, {v(g.acc(m,0)+i)}\nv_fmac_f32 {v(F+2*m+1)}, {v(g.acc(m,0)+i)}, {v(g.acc(m,0)+i)}")
    xred([F,F+1,F+2,F+3],[F+4,F+5,F+6,F+7])
    e(f"s_lshl_b32 s48, s31, 14")
    for m in range(2): e(f"buffer_store_dwordx2 {v(F+2*m,2)}, v7, s[56:59], s48 offen offset:{128*m} sc1")
    e("v_lshrrev_b32 v15, 4, v0\nv_lshl_add_u32 v15, v15, 16, v7")
    e("v_bfe_u32 v4, v0, 2, 2\nv_lshlrev_b32 v6, 8, v4\nv_lshrrev_b32 v4, 4, v0\nv_lshl_add_u32 v6, v4, 6, v6\nv_and_b32 v4, 3, v0\nv_lshl_add_u32 v6, v4, 4, v6\ns_setprio 0\ns_waitcnt vmcnt(0)\nk3_poll:")
    for m in range(2):
        for c in range(4): e(f"s_mov_b32 s48, {16384*c}\nbuffer_load_dwordx2 {v(F+8*m+2*c,2)}, v15, s[56:59], s48 offen offset:{128*m} sc1")
    e(f"s_waitcnt vmcnt(0)\nv_max3_u32 v4, {v(F+1)}, {v(F+3)}, {v(F+5)}\nv_max3_u32 v4, v4, {v(F+7)}, {v(F+9)}\nv_max3_u32 v4, v4, {v(F+11)}, {v(F+13)}\nv_max_u32 v4, v4, {v(F+15)}\nv_cmp_eq_u32 vcc, -1, v4\ns_nop 4\ns_cbranch_vccnz k3_poll")
    stamp(4)
    for m in range(2):
        for c in range(1,4): e(f"v_add_f32 {v(F+8*m)}, {v(F+8*m)}, {v(F+8*m+2*c)}\nv_add_f32 {v(F+8*m+1)}, {v(F+8*m+1)}, {v(F+8*m+2*c+1)}")
    xred([F,F+1,F+8,F+9],[F+4,F+5,F+6,F+7])
    for m in range(2):
        fin(F+8*m,F+8*m+1,2304)
        for i in range(36): e(f"v_fma_f32 {v(g.acc(m,0)+i)}, {v(g.acc(m,0)+i)}, {v(F+8*m+1)}, {v(F+8*m)}")
    e("k3_st:")
    for t in range(9):
        for m in range(2):
            for h in range(2): e(f"v_cvt_pk_bf16_f32 {v(W+4*t+2*m+h)}, {v(g.acc(m,t)+2*h)}, {v(g.acc(m,t)+2*h+1)}")
        e(f"s_mov_b32 s48, {1024*t}\nbuffer_store_dwordx4 {v(W+4*t,4)}, v6, s[52:55], s48 offen")
    stamp(5); stampout(6); stampout(6,256)
    e("k3_end:\ns_endpgm")
    kend(n,512,256,g.lds+2048,F+24,g.na)
```

```python
from base import *
def k0():
    n="k0_kernel"; kstart(n)
    e("s_cmp_ge_u32 s2, 236\ns_cbranch_scc1 k0_end")
    ldptr([(4,X),(6,CC),(8,WMOD),(10,WS),(24,DBG),(26,WQ),(28,KC),(36,VC)])
    waveid(3,1)
    e("s_cmp_ge_u32 s2, 108\ns_cbranch_scc1 k0_ln\ns_lshl_b32 s30, s2, 6\ns_sub_u32 s31, 3981312, s30\ns_lshl_b32 s32, s2, 7\ns_waitcnt lgkmcnt(0)")
    srd(12,8,0,"s31",30); srd(16,6,0,1152); srd(20,10,MOD,128,32)
    e("v_lshrrev_b32 v3, 2, v0\nv_lshlrev_b32 v3, 1, v3")
    for i in range(9): e(f"buffer_load_ushort {v(60+i)}, v3, s[16:19], 0 offen offset:{128*i}")
    gemv_loads(12,6912)
    e("s_waitcnt vmcnt(9)")
    for i in range(9):
        r=60+i
        e(f"v_lshlrev_b32 {v(r)}, 16, {v(r)}\nv_mul_f32 v4, {f2h(-1.4426950408889634)}, {v(r)}\nv_exp_f32 v4, v4\ns_nop 0\nv_add_f32 v4, 1.0, v4\nv_rcp_f32 v4, v4\ns_nop 0\nv_mul_f32 {v(r)}, {v(r)}, v4")
        rbf(r,r)
    gemv(1,12,6912,"k0")
    e("s_cmp_lg_u32 s3, 0\ns_cbranch_scc1 k0_end")
    rbf(2,2)
    e("s_sub_u32 s33, s2, 18\ns_cmp_lt_u32 s33, 18\ns_cbranch_scc1 k0_p1\ns_sub_u32 s33, s2, 72\ns_cmp_lt_u32 s33, 18\ns_cbranch_scc0 k0_st\nk0_p1:\nv_add_f32 v2, 1.0, v2")
    rbf(2,2)
    e("k0_st:\nv_lshlrev_b32 v3, 2, v0\nbuffer_store_dword v2, v3, s[20:23], 0 offen sc1\ns_cmp_ge_u32 s2, 36\ns_cbranch_scc1 k0_end")
    srd(44,24,0,4)
    e("v_mov_b32 v4, 1\ns_waitcnt vmcnt(0)\nbuffer_atomic_add v4, v3, s[44:47], 0 offen sc1\ns_endpgm")
    e("k0_pf:\ns_sub_u32 s30, s2, 108\ns_lshl_b32 s30, s30, 1\ns_add_u32 s30, s30, s3\ns_sub_u32 s30, s30, 2\nv_and_b32 v1, 63, v0\nv_lshlrev_b32 v1, 7, v1\ns_mul_i32 s31, s30, 18432\ns_lshr_b32 s32, s30, 4\ns_lshl_b32 s32, s32, 19\ns_and_b32 s33, s30, 15\ns_lshl_b32 s33, s33, 13\ns_add_u32 s32, s32, s33\ns_waitcnt lgkmcnt(0)")
    srd(12,26,0,18432,31); srd(16,28,393216,8192,32); srd(20,36,393216,8192,32)
    for i in range(3): e(f"s_mov_b32 s34, {8192*i}\nbuffer_load_dword {v(2+i)}, v1, s[12:15], s34 offen")
    if 'CP' in FL:
        e("s_lshr_b32 s35, s30, 4\ns_lshl_b32 s35, s35, 1\ns_and_b32 s34, s30, 1\ns_add_u32 s35, s35, s34\ns_cmp_ge_u32 s35, 9\ns_cbranch_scc1 k0_ncp\ns_getpc_b64 s[38:39]\nk0_pc:\ns_lshl_b32 s35, s35, 13\nv_add_u32 v8, s35, v1\nv_min_u32 v8, k5_end-k0_pc, v8\nv_mov_b32 v9, s39\nv_add_co_u32 v8, vcc, s38, v8\nv_addc_co_u32 v9, vcc, 0, v9, vcc\nglobal_load_dword v7, v[8:9], off\nk0_ncp:")
    e("buffer_load_dword v5, v1, s[16:19], 0 offen\nbuffer_load_dword v6, v1, s[20:23], 0 offen\ns_waitcnt vmcnt(0)\ns_endpgm")
    e("k0_ln:\ns_cmp_ge_u32 s3, 2\ns_cbranch_scc1 k0_pf\ns_sub_u32 s30, s2, 108\ns_mul_i32 s31, s30, 18432\ns_lshr_b32 s32, s30, 1\ns_mul_i32 s32, s32, 36864\ns_and_b32 s33, s30, 1\ns_lshl_b32 s33, s33, 8\ns_waitcnt lgkmcnt(0)")
    srd(12,4,0,18432,31); srd(16,10,N1,36864,32)
    e("v_lshrrev_b32 v1, 3, v0\nv_and_b32 v2, 7, v0\nv_mul_u32_u24 v3, 1152, v1\nv_lshl_add_u32 v3, v2, 4, v3")
    for i in range(9): e(f"buffer_load_dwordx4 {v(8+4*i,4)}, v3, s[12:15], 0 offen offset:{128*i}")
    e("v_lshlrev_b32 v3, 9, v2\nv_lshl_add_u32 v3, v1, 4, v3\nv_add_u32 v3, s33, v3\nv_mov_b32 v4, 0\nv_mov_b32 v5, 0")
    for i in range(36):
        if i%4==0: e(f"s_waitcnt vmcnt({8-i//4})")
        unpack(48+2*i,49+2*i,8+i)
        e(f"v_add_f32 v4, v4, {v(48+2*i)}\nv_add_f32 v5, v5, {v(49+2*i)}")
    def red8():
        e("v_add_f32 v4, v4, v5")
        for m in ("quad_perm:[1,0,3,2]","quad_perm:[2,3,0,1]","row_half_mirror"):
            e(f"s_nop 1\nv_add_f32_dpp v4, v4, v4 {m} row_mask:0xf bank_mask:0xf")
    red8()
    e(f"v_mul_f32 v6, {f2h(1/576)}, v4\nv_mov_b32 v4, 0\nv_mov_b32 v5, 0")
    for i in range(72): e(f"v_sub_f32 {v(48+i)}, {v(48+i)}, v6\nv_fmac_f32 {v(4+i%2)}, {v(48+i)}, {v(48+i)}")
    red8()
    e(f"v_mov_b32 v5, {f2h(1e-5)}\nv_fmamk_f32 v4, v4, {f2h(1/576)}, v5\nv_rsq_f32 v4, v4\ns_nop 0")
    for i in range(72): e(f"v_mul_f32 {v(48+i)}, {v(48+i)}, v4")
    srd(20,10,MOD,4608); srd(44,24,0,4)
    e("v_mov_b32 v5, 0\nv_lshlrev_b32 v2, 5, v2\ns_mov_b32 s36, 2304\nk0_poll:\nbuffer_load_dword v4, v5, s[44:47], 0 offen sc1\ns_waitcnt vmcnt(0)\nv_readfirstlane_b32 s35, v4\ns_nop 3\ns_cmp_ge_u32 s35, 36\ns_cbranch_scc1 k0_go\ns_sleep 4\ns_branch k0_poll\nk0_go:")
    def ld(i):
        for q in range(4): e(f"buffer_load_dwordx4 {v(120+16*(i%8)+4*q,4)}, v2, s[20:23], {'s36' if q>1 else 0} offen offset:{256*i+16*(q%2)} sc1")
    for i in range(8): ld(i)
    for i in range(9):
        e(f"s_waitcnt vmcnt({28 if i==0 else (4*(8-i)+i if i<8 else 7)})")
        b=120+16*(i%8)
        for j in range(8): e(f"v_fma_f32 {v(48+8*i+j)}, {v(48+8*i+j)}, {v(b+8+j)}, {v(b+j)}")
        for j in range(4): e(f"v_cvt_pk_bf16_f32 {v(8+4*i+j)}, {v(48+8*i+2*j)}, {v(49+8*i+2*j)}")
        if i==0: ld(8)
        e(f"s_mov_b32 s34, {4096*i}\nbuffer_store_dwordx4 {v(8+4*i,4)}, v3, s[16:19], s34 offen")
    e("k0_end:\ns_endpgm")
    kend(n,236,256,4096,248)
```

```python
from base import *
OO,SS,QF,FB,MISC=16,80,144,176,208
NR=80
CSL=9*16384
SP=[0,1,7,8,9,10,11,15]
def k1():
    n="k1_kernel"; kstart(n)
    e("s_cmp_ge_u32 s2, 256\ns_cbranch_scc1 k1_end")
    ldptr([(4,WQ),(6,KC),(8,VC),(10,WS),(28,WSPI)]); waveid(3,1)
    if 'C1' in FL: e(cpf(v(NR)))
    e("s_and_b32 s30, s2, 3\ns_lshl_b32 s30, s30, 3\ns_bfe_u32 s31, s2, 0x30003\ns_add_u32 s30, s30, s31\ns_lshr_b32 s31, s2, 6\ns_and_b32 s34, s2, 4\ns_add_u32 s31, s31, s34\ns_lshl_b32 s34, s31, 3\ns_add_u32 s34, s34, s3")
    e("s_lshl_b32 s35, s30, 8\ns_sub_u32 s36, 4718592, s35\ns_lshr_b32 s37, s30, 1\ns_lshl_b32 s37, s37, 19\ns_mul_i32 s38, s34, 36864\ns_lshl_b32 s39, s34, 18\ns_lshl_b32 s40, s30, 13\ns_add_u32 s39, s39, s40")
    e("s_and_b32 s41, s3, 3\ns_lshl_b32 s42, s2, 2\ns_add_u32 s42, s42, s41\ns_lshr_b32 s43, s42, 4\ns_lshl_b32 s43, s43, 17\ns_and_b32 s44, s42, 15\ns_lshl_b32 s44, s44, 8\ns_add_u32 s43, s43, s44\ns_lshl_b32 s42, s42, 13\ns_waitcnt lgkmcnt(0)")
    srd(12,4,0,"s36",35); srd(16,6,393216,131072,37); srd(20,8,393216,131072,37); srd(24,10,N1,36864,38)
    srd(56,10,O,8192,39); srd(60,28,0,31*4096+256,43); srd(64,10,WSP,8192,42)
    e("v_and_b32 v0, 63, v0\nv_lshlrev_b32 v1, 4, v0\ns_cmp_ge_u32 s3, 4\ns_cselect_b64 vcc, -1, 0\ns_lshl_b32 s46, s3, 11\ns_lshl_b32 s47, s41, 12")
    e("v_lshrrev_b32 v14, 4, v0\nv_lshlrev_b32 v15, 2, v14\nv_and_b32 v13, 15, v0\nv_xor_b32 v15, v15, v13\nv_lshlrev_b32 v15, 4, v15\ns_lshl_b32 s48, s3, 3\nv_add_u32 v12, s48, v14\nv_lshl_add_u32 v2, v12, 13, v15")
    e("v_lshl_add_u32 v3, v14, 8, v15\nv_add_u32 v3, s47, v3")
    for i in range(4): e(f"v_or_b32 v12, {4*i}, v14\nv_xor_b32 v12, v12, v13\nv_lshlrev_b32 v12, 4, v12\nv_lshl_add_u32 v12, v14, 8, v12\nv_add_u32 {v(4+i)}, s47, v12")
    e("v_and_b32 v12, 31, v0\nv_lshrrev_b32 v14, 5, v0\nv_xor_b32 v15, v14, v13\nv_lshlrev_b32 v15, 4, v15\nv_lshl_add_u32 v8, v12, 8, v15")
    e("v_bfe_u32 v12, v0, 2, 2\nv_mul_u32_u24 v9, 320, v12\nv_bfe_u32 v15, v0, 4, 1\nv_lshl_add_u32 v9, v15, 5, v9\nv_lshl_add_u32 v10, v14, 11, v9\nv_lshl_add_u32 v9, v14, 10, v9")
    e("v_and_b32 v12, 3, v0\nv_lshl_add_u32 v9, v12, 3, v9\nv_and_b32 v15, 1, v0\nv_lshl_add_u32 v10, v15, 4, v10\nv_bfe_u32 v15, v0, 1, 1\nv_lshl_add_u32 v10, v15, 3, v10")
    M,LS,AL,T0,AD=MISC,MISC+1,MISC+2,MISC+4,MISC+8
    RT=224
    Q={0:[],1:[]}
    def op(txt,need,grp=(0,1)):
        e(txt)
        for g_ in grp: Q[g_].append(need(g_) if callable(need) else need)
    lab=[0]
    def only(grp,fn):
        lab[0]+=1; e(f"s_cbranch_vcc{'nz' if grp==0 else 'z'} k1_s{lab[0]}"); fn(); e(f"k1_s{lab[0]}:")
    def wcount(g_,T):
        idx=[i for i,x in enumerate(Q[g_]) if x<=T]
        if not idx: return None
        c=len(Q[g_])-1-idx[-1]; del Q[g_][:idx[-1]+1]; return min(c,63)
    def barrier(seg):
        a,b=wcount(0,seg),wcount(1,seg+1)
        if a==b:
            if a is not None: e(f"s_waitcnt vmcnt({a})")
        else:
            if a is not None: only(0,lambda: e(f"s_waitcnt vmcnt({a})"))
            if b is not None: only(1,lambda: e(f"s_waitcnt vmcnt({b})"))
        e("s_barrier")
        if seg in SP: stamp(1+SP.index(seg)); e("s_waitcnt lgkmcnt(0)" if "T" in FL else "")
    segq=lambda t: min(t,7)
    def n1load(t):
        for i in range(4): op(f"s_mov_b32 s48, {4096*t}\nbuffer_load_dwordx4 {v(NR+16*(t%4)+4*i,4)}, v1, s[24:27], s48 offen offset:{1024*i}",lambda g_: segq(t)+g_)
    def wqdma(t):
        for i in range(2): op(f"s_add_u32 m0, s46, {t*16384+i*1024}\ns_mov_b32 s48, {(64*t+4*i)*8192}\nbuffer_load_dwordx4 v2, s[12:15], s48 offen lds",segq(t))
    def kvdma(kind,tile,slot,need):
        e(f"s_add_u32 m0, s47, {slot*16384}\ns_mov_b32 s48, {tile*16384}")
        for i in range(4): op(f"buffer_load_dwordx4 {v(4+i) if kind=='K' else 'v3'}, {'s[16:19]' if kind=='K' else 's[20:23]'}, s48 offen offset:{1024*i} lds",need,(1,))
    stamp(0)
    for t in range(4): n1load(t); wqdma(t)
    slots={('K',0):0,('K',1):1,('V',0):2,('V',1):3,('K',2):4,('K',3):5,('V',2):7,('V',3):8,('K',4):0,('K',5):1,
           ('V',4):2,('V',5):3,('K',6):4,('K',7):5,('V',6):7,('V',7):8}
    only(1,lambda: e(f"s_waitcnt vmcnt({wcount(1,0)})\ns_barrier"))
    def addrs(base,nn,sh,slot):
        for i in range(nn): e(f"v_xor_b32 {v(AD+i)}, {i<<sh}, {v(base)}\nv_add_u32 {v(AD+i)}, {slot*16384}, {v(AD+i)}")
    def pipeline(steps):
        if steps[0][0]: steps[0][0]()
        cur=steps[0][1](0)
        for r in cur: e(r)
        for i,(pre,rd,mid,mf) in enumerate(steps):
            nx=[]; lead=4 if len(cur)==12 else 0; per=(len(cur)-lead)//4
            if lead: e(f"s_waitcnt lgkmcnt({len(cur)-lead})")
            if mid: mid()
            if i+1<len(steps):
                if steps[i+1][0]: steps[i+1][0]()
                nx=steps[i+1][1]((i+1)%2)
            ms=mf(i%2); k=0
            for j,m in enumerate(ms):
                if 'W4' in FL: e(f"s_waitcnt lgkmcnt({per*(3-j)+k})")
                elif j%2==0: e(f"s_waitcnt lgkmcnt({per*(2-j)+k})")
                e(m)
                want=len(nx)*(j+1)//4
                while k<want: e(nx[k]); k+=1
            cur=nx
    def qsteps(t):
        st=[]
        for ks in range(4):
            kk=4*t+ks; HF=NR+16*(t%4)+4*ks; mid=None
            rd=lambda b,ks=ks: [f"ds_read_b64_tr_b16 {v(FB+16*b+4*db+2*u,2)}, {v(AD+db)} offset:{ks*4096+u*1024}" for db in range(4) for u in range(2)]
            mf=lambda b,kk=kk,HF=HF: [f"v_mfma_f32_32x32x16_bf16 {v(OO+16*db,16)}, {v(FB+16*b+4*db,4)}, {v(HF,4)}, {v(OO+16*db,16) if kk else 0}" for db in range(4)]
            st.append(((lambda t=t: addrs(10,4,6,t)) if ks==0 else None,rd,mid,mf))
        return st
    def qksteps(c,mid0=None):
        st=[]
        sl=slots[('K',2*c)]
        for ks in range(8):
            rd=lambda b,ks=ks: [f"ds_read_b128 {v(FB+16*b+4*kb,4)}, {v(AD+ks)} offset:{kb*8192}" for kb in range(4)]
            mf=lambda b,ks=ks: [f"v_mfma_f32_32x32x16_bf16 {v(SS+16*kb,16)}, {v(FB+16*b+4*kb,4)}, {v(QF+4*ks,4)}, {v(SS+16*kb,16) if ks else 0}" for kb in range(4)]
            st.append(((lambda: addrs(8,8,5,sl)) if ks==0 else None,rd,mid0 if ks==0 else None,mf))
        return st
    def pvsteps(c):
        st=[]; sl=slots[('V',2*c)]
        for ks in range(8):
            rd=lambda b,ks=ks: [f"ds_read_b64_tr_b16 {v(FB+16*b+4*db+2*u,2)}, {v(AD+db)} offset:{ks*4096+u*2048}" for db in range(4) for u in range(2)]
            mf=lambda b,ks=ks: [f"v_mfma_f32_32x32x16_bf16 {v(OO+16*db,16)}, {v(FB+16*b+4*db,4)}, {v(SS+4*ks,4)}, {v(OO+16*db,16) if (ks or c) else 0}" for db in range(4)]
            st.append(((lambda: addrs(9,4,6,sl)) if ks==0 else None,rd,None,mf))
        return st
    def qcvt():
        e("s_nop 7\ns_nop 3")
        for i in range(32): e(f"v_cvt_pk_bf16_f32 {v(QF+i)}, {v(OO+2*i)}, {v(OO+2*i+1)}")
        e("s_nop 1")
    early=[('K',0,7),('K',1,7),('V',0,9),('V',1,9),('K',2,9),('K',3,9)]
    for t in range(7):
        barrier(t)
        if t<5: wqdma(t+4)
        if t>=1:
            if t<6: n1load(t+3)
            k,i,nd=early[t-1]; only(1,lambda: kvdma(k,i,slots[(k,i)],nd))
        pipeline(qsteps(t))
    barrier(7)
    pipeline(qsteps(7)+qsteps(8)+qksteps(0,qcvt))
    e(f"s_mov_b32 s50, {f2h(128**-0.5*1.4426950408889634)}")
    for c in range(4):
        if 'PR' in FL: e('s_setprio 0')
        barrier(8+2*c)
        if c<3:
            def f():
                for k,i in [('V',2*c+2),('V',2*c+3)]+([('K',2*c+4),('K',2*c+5)] if c<2 else []): kvdma(k,i,slots[(k,i)],11+2*c)
            only(1,f)
        if c==0:
            def f():
                e("v_and_b32 v12, 15, v0\nv_lshlrev_b32 v12, 12, v12\nv_bfe_u32 v13, v0, 4, 1\nv_lshl_add_u32 v12, v13, 5, v12\nv_lshrrev_b32 v13, 5, v0\nv_lshl_add_u32 v12, v13, 4, v12\ns_mov_b32 s48, 65536")
                for i in range(8): op(f"buffer_load_dwordx4 {v(RT+4*i,4)}, v12, s[60:63], {'s48' if i%2 else 0} offen offset:{64*(i//2)}",10,(0,))
            only(0,f)
        if c==1:
            def f():
                e("s_mov_b32 s48, 4096")
                for i in range(8): op(f"buffer_store_dwordx4 {v(RT+4*i,4)}, v1, s[64:67], {'s48' if i>=4 else 0} offen offset:{1024*(i%4)}",99,(0,))
            only(0,f)
        if c==2:
            ldptr([(4,WO),(6,WIN),(8,WOUT)]); e("s_lshl_b32 s41, s2, 3\ns_add_u32 s41, s41, s3\nv_lshlrev_b32 v13, 6, v0\nv_mov_b32 v14, -1\nv_lshlrev_b32 v15, 2, v0\ns_lshl_b32 s42, s41, 7\ns_waitcnt lgkmcnt(0)")
            for p,sz in ((4,4718592),(6,5308416),(8,2654208)):
                srd(24,p,0,sz); op(f"s_mul_i32 s48, s41, {sz//2048}\nbuffer_load_dword v2, v13, s[24:27], s48 offen",99)
            srd(24,10,ST3,128,42); op("buffer_store_dword v14, v15, s[24:27], 0 offen",99)
            srd(24,10,FG,4,42); op("buffer_store_dword v14, v15, s[24:27], 0 offen",99)
        e("s_nop 7")
        for h in range(2):
            b=SS+32*h
            e(f"v_max3_f32 {v(T0+h)}, {v(b)}, {v(b+1)}, {v(b+2)}")
            for i in range(3,31,2): e(f"v_max3_f32 {v(T0+h)}, {v(T0+h)}, {v(b+i)}, {v(b+i+1)}")
        e(f"v_max3_f32 {v(T0)}, {v(T0)}, {v(SS+31)}, {v(SS+63)}")
        if c: e(f"v_max3_f32 {v(T0)}, {v(T0)}, {v(T0+1)}, {v(M)}")
        else: e(f"v_max_f32 {v(T0)}, {v(T0)}, {v(T0+1)}")
        xred([T0],[T0+1],"v_max_f32",False)
        if c: e(f"v_sub_f32 {v(AL)}, {v(M)}, {v(T0)}\nv_mul_f32 {v(AL)}, s50, {v(AL)}\nv_exp_f32 {v(AL)}, {v(AL)}")
        e(f"v_mov_b32 {v(M)}, {v(T0)}\nv_mul_f32 {v(T0)}, s50, {v(T0)}")
        e(f"v_mul_f32 {v(LS)}, {v(LS)}, {v(AL)}" if c else f"v_mov_b32 {v(LS)}, 0")
        e(f"v_mov_b32 {v(T0+2)}, 0\nv_mov_b32 {v(T0+3)}, 0")
        for i in range(0,64,4):
            if 'PK1' in FL:
                for j in (0,2): e(f"v_pk_fma_f32 {v(SS+i+j,2)}, {v(SS+i+j,2)}, s[50:51], {v(T0,2)} op_sel_hi:[1,0,0] neg_lo:[0,0,1] neg_hi:[0,0,1]")
            else:
                for j in range(4): e(f"v_fma_f32 {v(SS+i+j)}, {v(SS+i+j)}, s50, -{v(T0)}")
            for j in range(4): e(f"v_exp_f32 {v(SS+i+j)}, {v(SS+i+j)}")
            if c and 'PK2' in FL:
                for j in (0,2): e(f"v_pk_mul_f32 {v(OO+i+j,2)}, {v(OO+i+j,2)}, {v(AL,2)} op_sel_hi:[1,0]")
            elif c:
                for j in range(4): e(f"v_mul_f32 {v(OO+i+j)}, {v(OO+i+j)}, {v(AL)}")
            if 'PK3' in FL:
                if not c: e("s_nop 0")
                for j in (0,2): e(f"v_pk_add_f32 {v(T0+2,2)}, {v(T0+2,2)}, {v(SS+i+j,2)}")
            else:
                for j in range(4): e(f"v_add_f32 {v(T0+2+j%2)}, {v(T0+2+j%2)}, {v(SS+i+j)}")
            for j in range(2): e(f"v_cvt_pk_bf16_f32 {v(SS+i//2+j)}, {v(SS+i+2*j)}, {v(SS+i+2*j+1)}")
        e(f"v_add_f32 {v(LS)}, {v(LS)}, {v(T0+2)}\nv_add_f32 {v(LS)}, {v(LS)}, {v(T0+3)}")
        barrier(9+2*c)
        if 'PR' in FL: e('s_setprio 1')
        pipeline(pvsteps(c)+(qksteps(c+1) if c<3 else []))
    only(0,lambda: e("s_barrier"))
    stamp(9)
    if 'C2' in FL: e(cpf(v(RT),"k2_kernel",True))
    xred([LS],[T0+1],"v_add_f32",False)
    e(f"v_rcp_f32 {v(LS)}, {v(LS)}\nv_bfe_u32 v12, v0, 4, 1\nv_lshlrev_b32 v12, 10, v12\ns_mov_b32 s48, 4096\nv_and_b32 v13, 15, v0\nv_lshl_add_u32 v12, v13, 4, v12\nv_lshrrev_b32 v13, 5, v0\nv_lshl_add_u32 v12, v13, 8, v12\ns_nop 4")
    for db in range(4):
        for i in range(16): e(f"v_mul_f32 {v(OO+16*db+i)}, {v(OO+16*db+i)}, {v(LS)}")
        for p in range(2):
            d=SS+8*db+4*p
            for h,i in enumerate((p,p+2)):
                for j in range(2): e(f"v_cvt_pk_bf16_f32 {v(d+2*h+j)}, {v(OO+16*db+4*i+2*j)}, {v(OO+16*db+4*i+2*j+1)}")
            e(f"buffer_store_dwordx4 {v(d,4)}, v12, s[56:59], {'s48' if db>1 else 0} offen offset:{2048*(db%2)+512*p}")
    stamp(10); stampout(11); stampout(11,0,4)
    e("k1_end:\ns_endpgm")
    kend(n,256,512,CSL,256)
```

```python
import sys
from base import *
import k0,k1,gemm
N="adaLN_cond__sliding_block_cached__mixer_gmlp__prompt"
hdr=''.join(l for l in open(f"cdna_kernels/{N}.s.ref") if l.startswith(';') and '@launch' not in l and 'Override' not in l and 'grid=ceil' not in l)
k0.k0(); k1.k1(); gemm.k2(); gemm.k3(); gemm.k4(); gemm.k5()
finish(sys.argv[1] if len(sys.argv)>1 else f"cdna_kernels/{N}.s",hdr)
```

```python
import struct
import os
FL=set(os.environ.get('FL','').split(','))|{'CP','C2','W4','PFQ'}
L=[]
def e(s):
    for x in s.split('\n'):
        x=x.strip()
        if x: L.append(x if x.endswith(':') else '  '+x)
def v(a,n=1): return f"v{a}" if n==1 else f"v[{a}:{a+n-1}]"
def a_(a,n=1): return f"a{a}" if n==1 else f"a[{a}:{a+n-1}]"
def s(a,n=1): return f"s{a}" if n==1 else f"s[{a}:{a+n-1}]"
def f2h(x): return hex(struct.unpack('<I',struct.pack('<f',x))[0])
X,KC,VC,WQ,WO,BX,WIN,WSPI,BSP,WOUT,CC,WMOD,OUT,DBG,WS=[8*i for i in range(15)]
_o=0
def al(n):
    global _o
    r=_o; _o+=(n+4095)//4096*4096; return r
MOD=al(3456*4); N1=al(2048*576*2); WSP=al(2048*2048*2); O=al(2048*4096*2); X1=al(2048*576*2); XC=al(2048*576*2)
ST2=al(6*2048*8); UV=al(32*2048); Z1=al(2048*2304*2); Z2=al(2048*2304*2); ST3=al(16*2048*8); FG=al(2048*128); PB=al(768*9216); Y=al(2048*2304*2)
KERN=[]
def kstart(name):
    e(f".p2align 8\n.globl {name}\n.type {name},@function\n{name}:")
def cpf(dest,tgt=None,wv=False):
    lb=f"pc_{len(L)}_{dest}"
    t=f"s_getpc_b64 s[96:97]\n{lb}:\nv_lshlrev_b32 v14, 7, v0\n"
    if wv: t+="s_lshl_b32 s98, s3, 13\nv_add_u32 v14, s98, v14\n"
    if tgt: t+=f"v_add_u32 v14, {tgt}-{lb}, v14\n"
    return t+f"v_min_u32 v14, k5_end-{lb}, v14\nv_mov_b32 v15, 0\nv_lshl_add_u64 v[14:15], v[14:15], 0, s[96:97]\nglobal_load_dword {dest}, v[14:15], off"
SO=[0]
def stamp(i):
    i+=SO[0]
    if 'T' in FL: e(f"s_memtime s[{70+2*i}:{71+2*i}]"+(f"\ns_memrealtime s[92:93]" if i==0 else ""))
def stampout(n,wg=0,wave=0):
    if 'T' not in FL: return
    lb=f"so_{len(L)}"
    e(f"s_memrealtime s[94:95]\ns_load_dwordx2 s[68:69], s[0:1], {DBG}\ns_cmp_lg_u32 s2, {wg}\ns_cbranch_scc1 {lb}\ns_cmp_lg_u32 s3, {wave}\ns_cbranch_scc1 {lb}\ns_waitcnt lgkmcnt(0)\nv_mov_b32 v1, 128")
    for i in range(1,n): e(f"s_sub_u32 s49, s{70+2*i}, s70\nv_mov_b32 v0, s49\nglobal_store_dword v1, v0, s[68:69] offset:{4*i+(64 if wave or wg else 0)}")
    e(f"s_sub_u32 s49, s94, s92\nv_mov_b32 v0, s49\nglobal_store_dword v1, v0, s[68:69] offset:{(64 if wave or wg else 0)}\n{lb}:")
def kend(name,grid,block,lds,nv,na=0):
    acc=(nv+3)//4*4
    KERN.append((name,grid,block,lds,acc+na if na else nv,acc))
def ldptr(pairs):
    for d,slot in pairs: e(f"s_load_dwordx2 {s(d,2)}, s[0:1], {slot}")
def srd(d,p,off,size,sreg=None):
    e(f"s_add_u32 {s(d)}, {s(p)}, {off}\ns_addc_u32 {s(d+1)}, {s(p+1)}, 0")
    if sreg is not None: e(f"s_add_u32 {s(d)}, {s(d)}, {s(sreg)}\ns_addc_u32 {s(d+1)}, {s(d+1)}, 0")
    e(f"s_mov_b32 {s(d+2)}, {size}\ns_mov_b32 {s(d+3)}, 0x20000")
def waveid(sd,vt):
    e(f"v_lshrrev_b32 {v(vt)}, 6, v0\ns_nop 0\nv_readfirstlane_b32 {s(sd)}, {v(vt)}")
def unpack(dlo,dhi,src):
    e(f"v_lshlrev_b32 {v(dlo)}, 16, {v(src)}\nv_and_b32 {v(dhi)}, 0xffff0000, {v(src)}")
def rbf(d,src):
    e(f"v_cvt_pk_bf16_f32 {v(d)}, {v(src)}, {v(src)}\nv_lshlrev_b32 {v(d)}, 16, {v(d)}")
def xred(r,t,op="v_add_f32",w16=True):
    for sw in (["v_permlane16_swap_b32"] if w16 else [])+["v_permlane32_swap_b32"]:
        for a,b in zip(r,t): e(f"v_mov_b32 {v(b)}, {v(a)}")
        e("s_nop 1")
        for a,b in zip(r,t): e(f"{sw} {v(a)}, {v(b)}")
        e("s_nop 1")
        for a,b in zip(r,t): e(f"{op} {v(a)}, {v(a)}, {v(b)}")
def gemv(nvec,wsrd,ldw,tag):
    for q in range(nvec):
        for j in range(8): e(f"v_mov_b32 {v(80+8*q+j)}, 0")
    for i in range(9):
        e(f"s_waitcnt vmcnt({8-i})")
        if tag=="k0" and i in (0,8): stamp(5+i//8)
        for j in range(4):
            unpack(4,5,20+4*i+j)
            for q in range(nvec):
                e(f"v_fmac_f32 {v(80+8*q+2*j)}, v4, {v(60+9*q+i)}\nv_fmac_f32 {v(81+8*q+2*j)}, v5, {v(60+9*q+i)}")
    for ror in (4,8):
        e("s_nop 1")
        for j in range(8*nvec): e(f"v_add_f32_dpp {v(80+j)}, {v(80+j)}, {v(80+j)} row_ror:{ror} row_mask:0xf bank_mask:0xf")
    e("v_lshrrev_b32 v4, 4, v0\nv_lshlrev_b32 v4, 7, v4\nv_and_b32 v5, 3, v0\nv_lshl_add_u32 v4, v5, 5, v4")
    for q in range(nvec):
        e(f"ds_write_b128 v4, {v(80+8*q,4)} offset:{2048*q}\nds_write_b128 v4, {v(84+8*q,4)} offset:{2048*q+16}")
    e("s_waitcnt lgkmcnt(0)\ns_barrier")
    e("v_bfe_u32 v4, v0, 5, 1\nv_lshlrev_b32 v4, 11, v4\nv_and_b32 v5, 31, v0\nv_lshl_add_u32 v4, v5, 2, v4")
    for i in range(16): e(f"ds_read_b32 {v(20+i)}, v4 offset:{128*i}")
    e("s_waitcnt lgkmcnt(0)")
    for st in (8,4,2,1):
        for i in range(st): e(f"v_add_f32 {v(20+i)}, {v(20+i)}, {v(20+i+st)}")
    e("v_mov_b32 v2, v20")
def gemv_loads(wsrd,ldw):
    e(f"v_lshrrev_b32 v3, 2, v0\nv_mul_u32_u24 v4, {ldw}, v3\nv_and_b32 v5, 3, v0\nv_lshl_add_u32 v4, v5, 4, v4")
    for i in range(9):
        e(f"s_mov_b32 s40, {64*i*ldw}\nbuffer_load_dwordx4 {v(20+4*i,4)}, v4, {s(wsrd,4)}, s40 offen")
def finish(path,hdr):
    out=hdr
    for i,x in enumerate(L):
        if 'buffer_store' in x and 'sc1' not in x:
            if 'dwordx4' in x and 'W0' not in FL: L[i]+=' sc1'
            if 'W2' in FL: L[i]+=' sc0 sc1'
            if 'W3' in FL: L[i]+=' nt'
    for n,g,b,l,nv,acc in KERN: out+=f"; @launch kernel={n} grid=({g},1,1) block=({b},1,1) lds={l}\n"
    out+='.amdgcn_target "amdgcn-amd-amdhsa--gfx950"\n.text\n'+'\n'.join(L)+'\n.section .rodata,"a"\n'
    for n,g,b,l,nv,acc in KERN:
        out+=f""".p2align 6
.amdhsa_kernel {n}
  .amdhsa_next_free_vgpr {nv}
  .amdhsa_next_free_sgpr 100
  .amdhsa_accum_offset {acc}
  .amdhsa_group_segment_fixed_size 0
  .amdhsa_kernarg_size 120
  .amdhsa_user_sgpr_count 2
  .amdhsa_user_sgpr_kernarg_segment_ptr 1
  .amdhsa_system_sgpr_workgroup_id_x 1
.end_amdhsa_kernel
"""
    open(path,'w').write(out)
```

```python
from base import *
def k0():
    n="k0_kernel"; kstart(n)
    e("s_cmp_ge_u32 s2, 236\ns_cbranch_scc1 k0_end")
    ldptr([(4,X),(6,CC),(8,WMOD),(10,WS),(24,DBG),(26,WQ),(28,KC),(36,VC)])
    if 'C1' in FL: e(cpf("v247"))
    stamp(0); waveid(3,1)
    e("s_cmp_ge_u32 s2, 108\ns_cbranch_scc1 k0_ln\ns_lshl_b32 s30, s2, 6\ns_sub_u32 s31, 3981312, s30\ns_lshl_b32 s32, s2, 7\ns_waitcnt lgkmcnt(0)")
    srd(12,8,0,"s31",30); srd(16,6,0,1152); srd(20,10,MOD,128,32)
    e("v_lshrrev_b32 v3, 2, v0\nv_lshlrev_b32 v3, 1, v3")
    for i in range(9): e(f"buffer_load_ushort {v(60+i)}, v3, s[16:19], 0 offen offset:{128*i}")
    e("s_cmp_lt_u32 s2, 36\ns_cbranch_scc1 k0_nw\ns_waitcnt vmcnt(0)\nk0_nw:")
    gemv_loads(12,6912)
    e("s_waitcnt vmcnt(9)"); stamp(1)
    for i in range(9):
        r=60+i
        e(f"v_lshlrev_b32 {v(r)}, 16, {v(r)}\nv_mul_f32 v4, {f2h(-1.4426950408889634)}, {v(r)}\nv_exp_f32 v4, v4\ns_nop 0\nv_add_f32 v4, 1.0, v4\nv_rcp_f32 v4, v4\ns_nop 0\nv_mul_f32 {v(r)}, {v(r)}, v4")
        rbf(r,r)
    gemv(1,12,6912,"k0")
    e("s_cmp_lg_u32 s3, 0\ns_cbranch_scc1 k0_end")
    stamp(2); rbf(2,2)
    e("s_sub_u32 s33, s2, 18\ns_cmp_lt_u32 s33, 18\ns_cbranch_scc1 k0_p1\ns_sub_u32 s33, s2, 72\ns_cmp_lt_u32 s33, 18\ns_cbranch_scc0 k0_st\nk0_p1:\nv_add_f32 v2, 1.0, v2")
    rbf(2,2)
    e("k0_st:\nv_lshlrev_b32 v3, 2, v0\nbuffer_store_dword v2, v3, s[20:23], 0 offen sc1\ns_cmp_ge_u32 s2, 36\ns_cbranch_scc1 k0_end")
    srd(44,24,0,4)
    e("v_mov_b32 v4, 1\ns_waitcnt vmcnt(0)\nbuffer_atomic_add v4, v3, s[44:47], 0 offen sc0 sc1"); stamp(3); srd(48,24,252,4)
    e("v_mov_b32 v5, 1\ns_waitcnt vmcnt(0)\nv_readfirstlane_b32 s35, v4\ns_nop 3\ns_cmp_lg_u32 s35, 35\ns_cbranch_scc1 k0_nl\nbuffer_store_dword v5, v3, s[48:51], 0 offen sc1\nk0_nl:"); stamp(4); stampout(7); e("s_endpgm")
    e("k0_pf:\ns_sub_u32 s30, s2, 108\ns_lshl_b32 s30, s30, 1\ns_add_u32 s30, s30, s3\ns_sub_u32 s30, s30, 2\nv_and_b32 v1, 63, v0\nv_lshlrev_b32 v1, 7, v1\ns_mul_i32 s31, s30, "+("8192" if 'PFH' in FL else "18432")+"\ns_lshr_b32 s32, s30, 4\ns_lshl_b32 s32, s32, 19\ns_and_b32 s33, s30, 15\ns_lshl_b32 s33, s33, 13\ns_add_u32 s32, s32, s33\ns_waitcnt lgkmcnt(0)")
    srd(12,26,0,18432,31); srd(16,28,393216,8192,32); srd(20,36,393216,8192,32)
    e("s_barrier\ns_barrier" if 'PFB' in FL else "s_barrier")
    for i in range(1 if 'PFH' in FL else 3): e(f"s_mov_b32 s34, {8192*i}\nbuffer_load_dword {v(2+i)}, v1, s[12:15], s34 offen")
    if 'CP' in FL:
        e("s_lshr_b32 s35, s30, 4\ns_lshl_b32 s35, s35, 1\ns_and_b32 s34, s30, 1\ns_add_u32 s35, s35, s34\ns_cmp_ge_u32 s35, 9\ns_cbranch_scc1 k0_ncp\ns_getpc_b64 s[38:39]\nk0_pc:\ns_lshl_b32 s35, s35, 13\nv_add_u32 v8, s35, v1\nv_min_u32 v8, k5_end-k0_pc, v8\nv_mov_b32 v9, s39\nv_add_co_u32 v8, vcc, s38, v8\nv_addc_co_u32 v9, vcc, 0, v9, vcc\nglobal_load_dword v7, v[8:9], off\nk0_ncp:")
    e(("" if 'PFQ' in FL else "buffer_load_dword v5, v1, s[16:19], 0 offen\nbuffer_load_dword v6, v1, s[20:23], 0 offen")+("" if 'PFB' in FL else "\ns_barrier")+"\ns_waitcnt vmcnt(0)\ns_endpgm")
    e("k0_ln:\ns_cmp_ge_u32 s3, 2\ns_cbranch_scc1 k0_pf\ns_sub_u32 s30, s2, 108\ns_mul_i32 s31, s30, 18432\ns_lshr_b32 s32, s30, 1\ns_mul_i32 s32, s32, 36864\ns_and_b32 s33, s30, 1\ns_lshl_b32 s33, s33, 8\ns_waitcnt lgkmcnt(0)")
    srd(12,4,0,18432,31); srd(16,10,N1,36864,32)
    e("v_lshrrev_b32 v1, 3, v0\nv_and_b32 v2, 7, v0\nv_mul_u32_u24 v3, 1152, v1\nv_lshl_add_u32 v3, v2, 4, v3")
    for i in range(9): e(f"buffer_load_dwordx4 {v(8+4*i,4)}, v3, s[12:15], 0 offen offset:{128*i}")
    e("v_lshlrev_b32 v3, 9, v2\nv_lshl_add_u32 v3, v1, 4, v3\nv_add_u32 v3, s33, v3\nv_mov_b32 v4, 0\nv_mov_b32 v5, 0")
    for i in range(36):
        if i%4==0: e(f"s_waitcnt vmcnt({8-i//4})")
        unpack(48+2*i,49+2*i,8+i)
        e(f"v_add_f32 v4, v4, {v(48+2*i)}\nv_add_f32 v5, v5, {v(49+2*i)}")
    stamp(1); e("s_barrier")
    def red8():
        e("v_add_f32 v4, v4, v5")
        for m in ("quad_perm:[1,0,3,2]","quad_perm:[2,3,0,1]","row_half_mirror"):
            e(f"s_nop 1\nv_add_f32_dpp v4, v4, v4 {m} row_mask:0xf bank_mask:0xf")
    red8()
    e(f"v_mul_f32 v6, {f2h(1/576)}, v4\nv_mov_b32 v4, 0\nv_mov_b32 v5, 0")
    for i in range(72): e(f"v_sub_f32 {v(48+i)}, {v(48+i)}, v6\nv_fmac_f32 {v(4+i%2)}, {v(48+i)}, {v(48+i)}")
    red8()
    e(f"v_mov_b32 v5, {f2h(1e-5)}\nv_fmamk_f32 v4, v4, {f2h(1/576)}, v5\nv_rsq_f32 v4, v4\ns_nop 0")
    for i in range(72): e(f"v_mul_f32 {v(48+i)}, {v(48+i)}, v4")
    stamp(2); srd(20,10,MOD,4608); srd(44,24,252,4)
    e("v_mov_b32 v5, 0\nv_lshlrev_b32 v2, 5, v2\ns_mov_b32 s36, 2304\ns_cmp_lg_u32 s3, 0\ns_cbranch_scc1 k0_go\nk0_poll:\nbuffer_load_dword v4, v5, s[44:47], 0 offen sc1\ns_waitcnt vmcnt(0)\nv_readfirstlane_b32 s35, v4\ns_nop 3\ns_cmp_eq_u32 s35, 1\ns_cbranch_scc1 k0_go\ns_sleep 2\ns_branch k0_poll\nk0_go:\ns_barrier")
    def ld(i):
        for q in range(4): e(f"buffer_load_dwordx4 {v(120+16*(i%8)+4*q,4)}, v2, s[20:23], {'s36' if q>1 else 0} offen offset:{256*i+16*(q%2)} sc1")
    stamp(3)
    for i in range(8): ld(i)
    for i in range(9):
        e(f"s_waitcnt vmcnt({28 if i==0 else (4*(8-i)+i if i<8 else 7)})")
        b=120+16*(i%8)
        for j in range(8): e(f"v_fma_f32 {v(48+8*i+j)}, {v(48+8*i+j)}, {v(b+8+j)}, {v(b+j)}")
        for j in range(4): e(f"v_cvt_pk_bf16_f32 {v(8+4*i+j)}, {v(48+8*i+2*j)}, {v(49+8*i+2*j)}")
        if i==0: ld(8)
        e(f"s_mov_b32 s34, {4096*i}\nbuffer_store_dwordx4 {v(8+4*i,4)}, v3, s[16:19], s34 offen")
    stamp(4); e("s_waitcnt vmcnt(0)" if 'T' in FL else ""); stamp(5); stampout(6,108)
    e("k0_end:\ns_endpgm")
    kend(n,236,256,4096,248)
```

```python
from base import *
class G:
    def __init__(g,tag,NT,nst,R,D,ldw,mode,KS=1,unroll=False):
        MT=2; g.tag,g.MT,g.NT,g.nst,g.R,g.D,g.ldw,g.mode,g.KS=tag,MT,NT,nst,R,D,ldw,mode,KS
        g.BK=64*KS; g.RB=NT*32; g.SB=g.BK*g.RB; g.WB=g.SB//4; g.nW=(g.WB+1023)//1024; g.nA=4
        g.ACC=20; g.WF=20+MT*NT*4; g.FREE=g.WF+8*NT; g.spw=65536//g.SB; g.nwin=(R+g.spw-1)//g.spw
        g.lds=R*g.SB; g.na=R*g.nA*4; g.cnt=0 if unroll else (nst-2)//R; g.Q=[]
        assert g.nwin<=3 and g.nW<=6
    def acc(g,m,t): return g.ACC+(m*g.NT+t)*4
    def soff(g): return f"s_add_u32 s64, s65, s66\ns_mul_i32 s45, s64, {4096*g.KS}\ns_mul_i32 s44, s64, {g.SB if g.mode=='lin' else g.BK*g.ldw}"
    def setup(g,mul,add=None):
        S=g.SBK=9 if g.nst%9==0 else 8
        if 'S16' in FL: S=g.SBK=2*S if g.nst>9 else S
        x=2 if S>9 else 1
        e(f"s_lshr_b32 s64, s2, 3\ns_and_b32 s66, s64, 7\ns_lshr_b32 s64, s64, 3\ns_mul_i32 s64, s64, {mul}\ns_add_u32 s66, s66, s64\ns_mul_i32 s66, s66, {x if 'ROT' in FL else 0}\ns_cmp_ge_u32 s66, {S}\ns_cselect_b32 s64, {S}, 0\ns_sub_u32 s66, s66, s64\ns_mov_b32 s65, 0\ns_mov_b32 s67, 0\n"+g.soff())
        if 'C1' in FL: e(cpf("a0"))
        e("v_and_b32 v0, 63, v0\nv_lshlrev_b32 v1, 4, v0")
        e(f"s_mul_i32 s46, s3, {g.WB}")
        if g.KS==2: e("s_lshr_b32 s51, s3, 1\ns_mul_i32 s48, s51, 5120\nv_add_u32 v16, s48, v1\nv_xor_b32 v17, 0x400, v16")
        if g.NT==12: e("s_lshl_b32 s48, s50, 10\nv_add_u32 v16, s48, v1\nv_xor_b32 v17, 0x400, v16\ns_mul_i32 s49, s51, 12")
        cpr=g.RB//16
        for i in range(g.nW):
            d=2+i
            if g.mode=='lin': e(f"s_add_u32 s48, s46, {i*1024}\nv_add_u32 {v(d)}, s48, v1")
            else:
                mg=(65536+cpr-1)//cpr
                assert all((c*mg)>>16==c//cpr for c in range(g.BK*cpr+64))
                e(f"s_lshr_b32 s48, s46, 4\ns_add_u32 s48, s48, {i*64}\nv_add_u32 v14, s48, v0\nv_mul_u32_u24 v15, {mg}, v14\nv_lshrrev_b32 v15, 16, v15")
                e(f"v_mul_u32_u24 {v(d)}, {cpr}, v15\nv_sub_u32 v14, v14, {v(d)}")
                if g.NT==6: e(f"v_bfe_u32 {v(d)}, v15, 2, 1\nv_lshlrev_b32 {v(d)}, 1, {v(d)}\nv_xor_b32 v14, v14, {v(d)}")
                if g.NT==12: e(f"v_and_b32 {v(d)}, 6, v15\nv_xor_b32 v14, v14, {v(d)}\nv_add_u32 v14, s49, v14\nv_subrev_u32 {v(d)}, 24, v14\nv_min_u32 v14, v14, {v(d)}")
                e(f"v_mul_u32_u24 {v(d)}, {g.ldw}, v15\nv_lshl_add_u32 {v(d)}, v14, 4, {v(d)}")
    def setup2(g):
        if g.mode=='lin':
            e("v_lshrrev_b32 v14, 5, v0\nv_lshlrev_b32 v8, 9, v14\nv_and_b32 v14, 3, v0\nv_lshl_add_u32 v8, v14, 6, v8\nv_bfe_u32 v14, v0, 2, 2\nv_lshl_add_u32 v8, v14, 4, v8\nv_bfe_u32 v14, v0, 4, 1\nv_lshl_add_u32 v8, v14, 3, v8")
        else:
            e(f"v_lshrrev_b32 v14, 2, v0\nv_mul_u32_u24 v8, {g.RB}, v14\nv_and_b32 v14, 3, v0\nv_lshl_add_u32 v8, v14, 3, v8")
        if g.KS==2: e(f"s_mul_i32 s48, s51, {64*g.RB}\nv_add_u32 v8, s48, v8")
        if g.NT==6:
            e("v_bfe_u32 v14, v0, 4, 1\nv_lshlrev_b32 v14, 5, v14\nv_add_u32 v11, 32, v8\nv_sub_u32 v11, v11, v14\nv_add_u32 v8, v8, v14")
        if g.NT==12:
            for q in range(4):
                e(f"v_bfe_u32 v14, v0, 3, 2\nv_xor_b32 v14, {q}, v14\nv_lshl_add_u32 {v(g.FREE+q)}, v14, 5, v8")
                for w in range(1,g.nwin): e(f"v_add_u32 {v(g.FREE+4*w+q)}, {w*g.spw*g.SB}, {v(g.FREE+q)}")
            return
        for w in range(1,g.nwin):
            e(f"v_add_u32 {v(8+w)}, {w*g.spw*g.SB}, v8")
            if g.NT==6: e(f"v_add_u32 {v(11+w)}, {w*g.spw*g.SB}, v11")
    def memops(g,st,lp=0):
        slot=st%g.R; A=[]; W=[]
        for i in range(4):
            ad,off=("v1",1024*i) if g.KS==1 and g.NT!=12 else (v(16+i%2),2048*(i//2))
            A.append(f"buffer_load_dwordx4 {a_((slot*4+i)*4,4)}, {ad}, s[16:19], s45 offen offset:{off}")
        S=g.SBK
        A[-1]+=f"\ns_add_u32 s66, s66, 1\ns_cmp_eq_u32 s66, {S}\ns_cselect_b32 s66, 0, s66\ns_add_u32 s67, s67, 1\ns_cmp_eq_u32 s67, {S}\ns_cselect_b32 s67, 0, s67\ns_cselect_b32 s64, {S}, 0\ns_add_u32 s65, s65, s64\n"+g.soff()
        for i in range(g.nW):
            half=(i+1)*1024>g.WB
            W.append(f"s_add_u32 m0, s46, {slot*g.SB+i*1024}\n"+("s_mov_b32 exec_hi, 0\n" if half else "s_nop 0\n")+f"buffer_load_dwordx4 {v(2+i)}, s[12:15], s44 offen lds"+("\ns_mov_b32 exec_hi, -1" if half else ""))
        if 'WRAP' in FL: A[-1]+='\ns_and_b32 s45, s45, 0x7fff'; W[-1]+='\ns_and_b32 s44, s44, 0x1ffff'
        if 'NT' in FL: A=[x.replace(' offen',' offen nt') if 0 else x.split('\n')[0]+' nt\n'+'\n'.join(x.split('\n')[1:]) for x in A]; W=[x.replace(' lds',' nt lds') for x in W]
        if 'SC' in FL: A=[x.split('\n')[0]+' sc1\n'+'\n'.join(x.split('\n')[1:]) for x in A]; W=[x.replace(' lds',' sc1 lds') for x in W]
        if lp and 'NOA' in FL: A=[]
        if lp and 'NOW' in FL: W=[]
        return [(o,st) for o in W+A]
    def op(g,o): e(o[0]); g.Q.append(o[1])
    def wait(g,st):
        idx=[i for i,x in enumerate(g.Q) if x<=st]
        if idx: e(f"s_waitcnt vmcnt({min(63,len(g.Q)-1-idx[-1])})"); del g.Q[:idx[-1]+1]
    def reads(g,slot,j,buf):
        r=[]; w=slot//g.spw; b=(slot%g.spw)*g.SB+j*32*g.RB
        for t in range(g.NT):
            for u in range(2):
                if g.mode=='lin': ad,off=8+w,b+t*1024+u*256
                elif g.NT==6: ad,off=(8 if t%2==0 else 11)+w,b+u*16*g.RB+(t&~1)*32
                elif g.NT==12: ad,off=g.FREE+4*w+t%4,b+u*16*g.RB+(t&~3)*32
                else: ad,off=8+w,b+u*16*g.RB+t*32
                r.append(f"ds_read_b64_tr_b16 {v(g.WF+buf*4*g.NT+4*t+2*u,2)}, {v(ad)} offset:{off}")
        return r
    def prologue(g):
        stamp(0)
        for st in range(g.D-1):
            for o in g.memops(st): g.op(o)
        g.setup2()
        for i in range(g.MT*g.NT*4): e(f"v_mov_b32 {v(g.ACC+i)}, 0")
        g.wait(0); e("s_barrier"); stamp(1); e('s_waitcnt lgkmcnt(0)' if 'T' in FL else '')
        for r in g.reads(0,0,0): e(r)
        g.mo=g.memops(g.D-1); hh=(len(g.mo)+1)//2
        for o in g.mo[:hh]: g.op(o)
        g.mo=g.mo[hh:]
    def stage(g,i,tail):
        MT,NT,R=g.MT,g.NT,g.R; h=(NT+1)//2; nm=MT*NT
        for j in range(2):
            rd=g.reads(i%R,1,1) if j==0 else g.reads((i+1)%R,0,0)
            if j==0: mo=g.mo; g.mo=[]
            else:
                mo=[]
                if tail and i==g.nst-1: rd=[]
                else:
                    g.wait(i+1); e("s_barrier")
                    if not tail or i+g.D<g.nst:
                        mo=g.memops(i+g.D,1); hh=(len(mo)+1)//2; g.mo=mo[hh:]; mo=mo[:hh]
            if 'NORD' in FL: rd=[]
            issued=0; k=0; gap=max(1,nm//max(1,len(mo)))
            for t in range(NT):
                if t==0: e(f"s_waitcnt lgkmcnt({min(15,2*(NT-h))})")
                if t==h: e(f"s_waitcnt lgkmcnt({min(15,issued)})")
                for m in range(MT):
                    if not "NOMF" in FL: e(f"v_mfma_f32_16x16x32_bf16 {v(g.acc(m,t),4)}, {v(g.WF+j*4*NT+4*t,4)}, {a_(((i%R)*4+j*MT+m)*4,4)}, {v(g.acc(m,t),4)}")
                    k+=1
                    want=min(len(rd),(len(rd)*k+nm-3)//(nm-2))
                    while issued<want: e(rd[issued]); issued+=1
                    if mo and k%gap==1%gap: g.op(mo.pop(0))
            for o in mo: g.op(o)
    def loop(g,late=[],lst=None):
        R=g.R
        if 'C2' in FL and g.tag!='k5': late=[cpf(a_(g.na),f"k{int(g.tag[1])+1}_kernel",True)]+late; g.na+=4
        if g.cnt:
            e(f"s_mov_b32 s47, {g.cnt}\n{g.tag}_loop:")
            for i in range(R): g.stage(i,False)
            e(f"s_sub_u32 s47, s47, 1\ns_cmp_lg_u32 s47, 0\ns_cbranch_scc1 {g.tag}_loop")
            sh=(g.cnt-1)*R; g.Q=[x+sh for x in g.Q]; g.mo=[(o,x+sh) for o,x in g.mo]
        if lst is None: lst=g.cnt*R
        for i in range(g.cnt*R,g.nst):
            if i==lst: g.mo=g.mo+[(o,999) for o in late]
            g.stage(i,True)
        stamp(2)
        if g.KS==2:
            e("s_mul_i32 s48, s3, 6144\nv_add_u32 v16, s48, v1\ns_xor_b32 s48, s3, 2\ns_mul_i32 s48, s48, 6144\nv_add_u32 v17, s48, v1")
            g.wait(998); e("s_barrier\ns_nop 4")
            for t in range(6): e(f"ds_write_b128 v16, {v(g.acc(1,t),4)} offset:{1024*t}")
            e("s_waitcnt lgkmcnt(0)\ns_barrier")
            for t in range(6): e(f"ds_read_b128 {v(g.acc(1,t),4)}, v17 offset:{1024*t}")
            e("s_waitcnt vmcnt(0) lgkmcnt(0)")
            for i in range(24): e(f"v_add_f32 {v(g.ACC+i)}, {v(g.ACC+i)}, {v(g.ACC+24+i)}")
        elif g.NT!=12: e("s_waitcnt vmcnt(0) lgkmcnt(0)\ns_nop 7")
def map_8x3():
    e("s_and_b32 s32, s2, 7\ns_lshr_b32 s33, s2, 3\ns_and_b32 s30, s33, 7\ns_lshr_b32 s31, s33, 3\ns_lshr_b32 s33, s32, 1\ns_lshl_b32 s33, s33, 3\ns_add_u32 s30, s30, s33\ns_and_b32 s32, s32, 1\ns_mul_i32 s32, s32, 3\ns_add_u32 s31, s31, s32")
def map_8x4():
    e("s_and_b32 s32, s2, 7\ns_bfe_u32 s33, s2, 0x50003\ns_and_b32 s30, s33, 7\ns_lshr_b32 s31, s33, 3\ns_and_b32 s33, s32, 1\ns_lshl_b32 s33, s33, 3\ns_add_u32 s30, s30, s33\ns_lshr_b32 s32, s32, 1\ns_lshl_b32 s32, s32, 2\ns_add_u32 s31, s31, s32")
def modvec(d,seg,nt):
    return [f"s_mov_b32 s48, {seg*2304}\nbuffer_load_dwordx4 {v(d+4*t,4)}, v19, s[24:27], s48 offen offset:{64*t}" for t in range(nt)]

def k2():
    n="k2_kernel"; kstart(n); g=G("k2",12,16,*((6,5) if 'R6' in FL else (5,4)),1152,'str'); F=g.WF+24
    e("s_cmp_ge_u32 s2, 240\ns_cbranch_scc1 k2_end")
    ldptr([(4,X),(6,WO),(8,WIN),(10,WS)]); waveid(3,1)
    e("s_cmp_ge_u32 s2, 192\ns_cbranch_scc1 k2_uv")
    e("s_bfe_u32 s52, s2, 0x20001\ns_and_b32 s50, s52, 1\ns_lshr_b32 s51, s52, 1\ns_and_b32 s30, s2, 1\ns_lshl_b32 s30, s30, 3\ns_bfe_u32 s31, s2, 0x30003\ns_add_u32 s30, s30, s31\ns_lshr_b32 s53, s2, 6")
    e("s_lshl_b32 s33, s30, 2\ns_add_u32 s33, s33, s3\ns_lshl_b32 s34, s33, 1\ns_add_u32 s34, s34, s50\ns_lshl_b32 s31, s53, 1\ns_add_u32 s31, s31, s51\ns_mul_i32 s35, s53, 384\ns_mul_i32 s36, s52, 1179648\ns_add_u32 s35, s35, s36\ns_sub_u32 s36, 4718592, s35")
    e("s_lshl_b32 s37, s33, 18\ns_lshl_b32 s38, s52, 16\ns_add_u32 s37, s37, s38\ns_mul_i32 s38, s34, 18432\ns_mul_i32 s39, s31, 192\ns_add_u32 s38, s38, s39\ns_lshl_b32 s39, s39, 1")
    e("s_mul_i32 s40, s33, 3\ns_add_u32 s40, s40, s53\ns_mul_i32 s41, s40, 36864\ns_lshl_b32 s40, s40, 9\ns_waitcnt lgkmcnt(0)")
    srd(12,6,0,"s36",35); srd(16,10,O,65536,37); srd(20,4,0,15*1152+192,38); srd(24,10,MOD,13824,39); srd(56,10,PB,36864,41); srd(60,10,FG,512,40)
    g.setup(3)
    e("v_and_b32 v18, 15, v0\nv_mul_u32_u24 v18, 1152, v18\nv_lshrrev_b32 v19, 4, v0\nv_lshl_add_u32 v18, v19, 3, v18\nv_lshlrev_b32 v19, 4, v19")
    g.prologue(); g.loop(); e("s_nop 7\ns_nop 3")
    QD=lambda j: g.ACC+48*(j&1)+24*(j>>1)
    for j in (2,1,3):
        for i in range(12): e(f"v_cvt_pk_bf16_f32 {v(QD(j)+i)}, {v(QD(j)+2*i)}, {v(QD(j)+2*i+1)}")
        e(f"s_xor_b32 s48, s52, {j}\ns_mul_i32 s48, s48, 9216\ns_add_u32 s48, s48, {3072*(j-1)}")
        for p in range(3): e(f"buffer_store_dwordx4 {v(QD(j)+4*p,4)}, v1, s[56:59], s48 offen offset:{1024*p} sc1")
    e("v_lshlrev_b32 v2, 7, v0\nv_lshlrev_b32 v3, 9, v0\ns_lshl_b32 s48, s52, 7\nv_add_u32 v3, s48, v3\nv_mov_b32 v4, 0\ns_mul_i32 s49, s52, 9216\ns_waitcnt vmcnt(0)\nbuffer_store_dword v4, v3, s[60:63], 0 offen sc1")
    for x in [f"buffer_load_dwordx2 {v(F+2*t,2)}, v18, s[20:23], 0 offen offset:{32*t}" for t in range(6)]+modvec(F+12,2,6)+modvec(F+36,4,6): e(x)
    stamp(3)
    e("k2_poll:\nbuffer_load_dword v4, v2, s[60:63], 0 offen sc1\ns_waitcnt vmcnt(0)\nv_cmp_ne_u32 vcc, 0, v4\ns_nop 1\ns_cbranch_vccz k2_go\ns_sleep 1\ns_branch k2_poll\nk2_go:")
    stamp(4)
    for j in (1,2,3):
        e(f"s_add_u32 s48, s49, {3072*(j-1)}")
        for p in range(3): e(f"buffer_load_dwordx4 {v(QD(j)+12+4*p,4)}, v1, s[56:59], s48 offen offset:{1024*p} sc1")
    for j in (1,2,3):
        e(f"s_waitcnt vmcnt({9-3*j})")
        for i in range(12):
            unpack(4,5,QD(j)+12+i); e(f"v_add_f32 {v(g.ACC+2*i)}, {v(g.ACC+2*i)}, v4\nv_add_f32 {v(g.ACC+2*i+1)}, {v(g.ACC+2*i+1)}, v5")
    stamp(5)
    e("s_mul_i32 s35, s34, 6\ns_add_u32 s35, s35, s31\ns_mul_i32 s35, s35, 3072\ns_lshr_b32 s36, s34, 1\ns_mul_i32 s36, s36, 36864\ns_mul_i32 s37, s31, 6144\ns_add_u32 s36, s36, s37\ns_and_b32 s37, s34, 1\ns_lshl_b32 s37, s37, 10\ns_add_u32 s36, s36, s37\ns_lshl_b32 s37, s31, 14\ns_lshl_b32 s38, s34, 7\ns_add_u32 s37, s37, s38")
    srd(12,10,X1,3072,35); srd(16,10,XC,5120,36); srd(20,10,ST2,128,37)
    e("v_mov_b32 v2, 0\nv_mov_b32 v3, 0"); W=g.WF
    for t in range(6):
        A=g.acc(0,t)
        for h in range(2):
            unpack(4,5,F+2*t+h)
            e(f"v_fmac_f32 v4, {v(A+2*h)}, {v(F+12+4*t+2*h)}\nv_fmac_f32 v5, {v(A+2*h+1)}, {v(F+13+4*t+2*h)}\nv_cvt_pk_bf16_f32 {v(W+2*t+h)}, v4, v5")
            unpack(4,5,W+2*t+h)
            e(f"v_add_f32 v2, v2, v4\nv_fmac_f32 v3, v4, v4\nv_add_f32 v2, v2, v5\nv_fmac_f32 v3, v5, v5")
            e(f"v_mul_f32 v4, v4, {v(F+36+4*t+2*h)}\nv_mul_f32 v5, v5, {v(F+37+4*t+2*h)}\nv_cvt_pk_bf16_f32 {v(W+12+2*t+h)}, v4, v5")
        if t%2:
            p=t//2
            e(f"s_mov_b32 s48, {2048*p}\nbuffer_store_dwordx4 {v(W+4*p,4)}, v1, s[12:15], 0 offen offset:{1024*p}\nbuffer_store_dwordx4 {v(W+12+4*p,4)}, v1, s[16:19], s48 offen")
    xred([2,3],[4,5])
    e("v_lshlrev_b32 v4, 3, v0\nbuffer_store_dwordx2 v[2:3], v4, s[20:23], 0 offen")
    stamp(6); stampout(7); stampout(7,101,2); e("s_endpgm")
    e("k2_uv:\ns_sub_u32 s30, s2, 192\ns_mul_i32 s30, s30, 3\ns_add_u32 s41, s30, 3\ns_waitcnt lgkmcnt(0)")
    srd(16,10,MOD,13824); srd(20,10,UV,65536)
    e("v_and_b32 v6, 0xfc, v0")
    for q,seg in enumerate((4,3)):
        for i in range(9): e(f"s_mov_b32 s48, {seg*2304}\nbuffer_load_dword {v(60+9*q+i)}, v6, s[16:19], s48 offen offset:{256*i}")
    e("k2_uvl:\ns_lshl_b32 s31, s30, 6\ns_sub_u32 s32, 5308416, s31")
    srd(12,8,0,"s32",31)
    gemv_loads(12,9216); gemv(2,12,9216,"k2")
    assert all((c*3641)>>19==c//144 for c in range(4608))
    e("s_lshl_b32 s31, s30, 5\nv_and_b32 v4, 31, v0\nv_add_u32 v4, s31, v4\nv_mul_u32_u24 v5, 3641, v4\nv_lshrrev_b32 v5, 19, v5\nv_mul_u32_u24 v5, 1472, v5\nv_lshl_add_u32 v4, v4, 2, v5\nv_bfe_u32 v5, v0, 5, 1\nv_mul_u32_u24 v5, 576, v5\nv_add_u32 v4, v4, v5")
    e("buffer_store_dword v2, v4, s[20:23], 0 offen\ns_waitcnt vmcnt(0)\ns_barrier\ns_add_u32 s30, s30, 1\ns_cmp_lt_u32 s30, s41\ns_cbranch_scc1 k2_uvl")
    e("k2_end:\ns_endpgm")
    kend(n,240,256,g.lds,g.FREE+12,g.na)

def k5():
    n="k5_kernel"; kstart(n); g=G("k5",6,18,5,4,1152,'str',2); F=g.FREE
    e("s_cmp_ge_u32 s2, 192\ns_cbranch_scc1 k5_end")
    ldptr([(4,OUT),(6,WOUT),(10,WS)]); waveid(3,1)
    map_8x3()
    e("s_and_b32 s33, s3, 1\ns_lshl_b32 s34, s30, 1\ns_add_u32 s33, s33, s34\ns_lshl_b32 s34, s33, 1\ns_lshr_b32 s35, s3, 1\ns_add_u32 s34, s34, s35\ns_mul_i32 s35, s31, 192\ns_sub_u32 s36, 2654208, s35\ns_mul_i32 s37, s33, 147456\ns_mul_i32 s38, s34, 18432\ns_add_u32 s38, s38, s35\ns_lshl_b32 s39, s35, 1\ns_mul_i32 s40, s34, 6\ns_add_u32 s40, s40, s31\ns_mul_i32 s40, s40, 3072\ns_waitcnt lgkmcnt(0)")
    srd(12,6,0,"s36",35); srd(16,10,Y,147456,37); srd(20,4,0,15*1152+192,38); srd(24,10,MOD,13824,39); srd(52,10,X1,3072,40)
    g.setup(3)
    e("v_and_b32 v18, 15, v0\nv_mul_u32_u24 v18, 1152, v18\nv_lshrrev_b32 v19, 4, v0\nv_lshl_add_u32 v18, v19, 3, v18\nv_lshlrev_b32 v19, 4, v19")
    g.prologue(); g.loop([f"buffer_load_dwordx4 {v(F+4*p,4)}, v1, s[52:55], 0 offen offset:{1024*p}" for p in range(3)]+modvec(F+12,5,6))
    for t in range(6):
        A=g.acc(0,t)
        for h in range(2):
            unpack(4,5,F+2*t+h)
            e(f"v_fmac_f32 v4, {v(A+2*h)}, {v(F+12+4*t+2*h)}\nv_fmac_f32 v5, {v(A+2*h+1)}, {v(F+13+4*t+2*h)}\nv_cvt_pk_bf16_f32 {v(g.WF+2*t+h)}, v4, v5")
        e(f"buffer_store_dwordx2 {v(g.WF+2*t,2)}, v18, s[20:23], 0 offen offset:{32*t}")
    stamp(3); stampout(4)
    e("k5_end:\ns_endpgm")
    kend(n,192,256,g.lds,F+36,g.na)

def k4():
    n="k4_kernel"; kstart(n); g=G("k4",9,32,6,5,0,'lin'); F=g.FREE
    e("s_cmp_ge_u32 s2, 256\ns_cbranch_scc1 k4_end")
    ldptr([(4,BSP),(10,WS)]); waveid(3,1)
    map_8x4()
    e("s_lshl_b32 s34, s30, 2\ns_add_u32 s34, s34, s3\ns_mul_i32 s35, s31, 589824\ns_lshl_b32 s37, s34, 17\ns_mul_i32 s38, s34, 9216\ns_add_u32 s38, s38, s35\ns_lshl_b32 s39, s34, 6")
    e("s_mul_i32 s40, s34, 147456\ns_mul_i32 s41, s31, 9\ns_lshr_b32 s41, s41, 1\ns_lshl_b32 s41, s41, 11\ns_add_u32 s40, s40, s41\ns_waitcnt lgkmcnt(0)")
    srd(12,10,Z2,589824,35); srd(16,10,WSP,131072,37); srd(20,10,Z1,9216,38); srd(24,4,0,64,39); srd(52,10,Y,10240,40)
    g.setup(2)
    e("v_and_b32 v18, 15, v0\nv_lshlrev_b32 v18, 1, v18")
    g.prologue(); g.loop([f"buffer_load_ushort {v(F+36+m)}, v18, s[24:27], 0 offen offset:{32*m}" for m in range(2)]+[f"s_mov_b32 s48, {1024*t}\nbuffer_load_dwordx4 {v(F+4*t,4)}, v1, s[20:23], s48 offen" for t in range(9)])
    W=g.WF
    for m in range(2):
        e(f"v_lshlrev_b32 {v(F+36+m)}, 16, {v(F+36+m)}")
        for t in range(9):
            A=g.acc(m,t)
            for h in range(2):
                unpack(4,5,F+4*t+2*m+h)
                e(f"v_add_f32 v6, {v(A+2*h)}, {v(F+36+m)}\nv_add_f32 v7, {v(A+2*h+1)}, {v(F+36+m)}\nv_mul_f32 v4, v4, v6\nv_mul_f32 v5, v5, v7\nv_cvt_pk_bf16_f32 {v(W+20*m+2*t+h)}, v4, v5")
    e("s_bitcmp1_b32 s31, 0\ns_cbranch_scc1 k4_odd")
    for par in range(2):
        for m in range(2):
            for p in range(4): e(f"s_mov_b32 s48, {2048*(p+par)}\nbuffer_store_dwordx4 {v(W+20*m+4*p+2*par,4)}, v1, s[52:55], s48 offen offset:{1024*m}")
            e(f"s_mov_b32 s48, {0 if par else 8192}\nbuffer_store_dwordx2 {v(W+20*m+(0 if par else 16),2)}, v1, s[52:55], s48 offen offset:{1024*m+8*par}")
        stamp(3); stampout(4)
        e("s_endpgm\nk4_odd:" if par==0 else "k4_end:\ns_endpgm")
    kend(n,256,256,g.lds,F+38,g.na)

def k3():
    n="k3_kernel"; kstart(n); g=G("k3",9,9,4,3,9216,'str',1,True); F=g.FREE; W=g.WF
    e("s_cmp_ge_u32 s2, 512\ns_cbranch_scc1 k3_end")
    ldptr([(6,WIN),(10,WS)]); waveid(3,1)
    map_8x4()
    e("s_cmp_lt_u32 s2, 256\ns_cselect_b32 s42, 16, 0\ns_cbranch_scc0 k3_lo\ns_setprio 2\nk3_lo:\ns_add_u32 s43, s42, s31")
    e("s_lshl_b32 s34, s30, 2\ns_add_u32 s34, s34, s3\ns_mul_i32 s35, s43, 288\ns_sub_u32 s36, 5308416, s35\ns_mul_i32 s37, s34, 36864\ns_lshl_b32 s38, s34, 8\ns_lshl_b32 s39, s43, 11")
    e(f"s_mul_i32 s40, s43, 589824\ns_mul_i32 s41, s34, 9216\ns_add_u32 s40, s40, s41\ns_waitcnt lgkmcnt(0)")
    assert Z2==Z1+16*589824
    srd(12,6,0,"s36",35); srd(16,10,XC,36864,37); srd(20,10,ST2,6*16384,38); srd(24,10,UV,1152,39); srd(52,10,Z1,9216,40)
    srd(56,10,ST3,16*16384,38)
    g.setup(1)
    e("v_and_b32 v7, 15, v0\nv_lshlrev_b32 v7, 3, v7")
    late=[f"s_mov_b32 s48, {16384*c}\nbuffer_load_dwordx2 {v(F+12*m+2*c,2)}, v7, s[20:23], s48 offen offset:{128*m}" for m in range(2) for c in range(6)]
    late+=[f"s_mov_b32 m0, {g.lds}\ns_nop 0\nbuffer_load_dwordx4 v1, s[24:27], 0 offen offset:{1024*q} lds" for q in range(2)]
    g.prologue(); g.loop(late,6)
    e(f"v_lshrrev_b32 v15, 4, v0\nv_lshlrev_b32 v15, 4, v15\nv_add_u32 v15, {g.lds}, v15")
    for q in range(2):
        for t in range(9): e(f"ds_read_b128 {v(W+36*q+4*t,4)}, v15 offset:{576*q+64*t}")
    def fin(sm,sq,n):
        e(f"v_mul_f32 {v(sm)}, {f2h(-1/n)}, {v(sm)}\nv_mov_b32 v4, {f2h(1e-5)}\nv_fmamk_f32 {v(sq)}, {v(sq)}, {f2h(1/n)}, v4\nv_fma_f32 {v(sq)}, -{v(sm)}, {v(sm)}, {v(sq)}\nv_max_f32 {v(sq)}, {v(sq)}, v4\nv_rsq_f32 {v(sq)}, {v(sq)}\ns_nop 0\nv_mul_f32 {v(sm)}, {v(sm)}, {v(sq)}")
    for m in range(2):
        for c in range(1,6): e(f"v_add_f32 {v(F+12*m)}, {v(F+12*m)}, {v(F+12*m+2*c)}\nv_add_f32 {v(F+12*m+1)}, {v(F+12*m+1)}, {v(F+12*m+2*c+1)}")
        fin(F+12*m,F+12*m+1,576)
    k0=-2*0.7978845608028654*1.4426950408889634
    e(f"s_waitcnt lgkmcnt(0)\nv_mov_b32 v14, {f2h(k0)}")
    T=F+2
    for m in range(2):
        for t in range(9):
            A=g.acc(m,t)
            for j in range(4): e(f"v_fma_f32 {v(T+j)}, {v(F+12*m)}, {v(W+4*t+j)}, {v(W+36+4*t+j)}")
            for j in range(4): e(f"v_fma_f32 {v(A+j)}, {v(A+j)}, {v(F+12*m+1)}, {v(T+j)}")
            for j in range(4): e(f"v_mul_f32 {v(T+j)}, {v(A+j)}, {v(A+j)}")
            for j in range(4): e(f"v_fmamk_f32 {v(T+j)}, {v(T+j)}, {f2h(k0*0.044715)}, v14")
            for j in range(4): e(f"v_mul_f32 {v(T+j)}, {v(T+j)}, {v(A+j)}")
            for j in range(4): e(f"v_exp_f32 {v(T+j)}, {v(T+j)}")
            for j in range(4): e(f"v_add_f32 {v(T+j)}, 1.0, {v(T+j)}")
            for j in range(4): e(f"v_rcp_f32 {v(T+j)}, {v(T+j)}")
            for j in range(4): e(f"v_mul_f32 {v(A+j)}, {v(A+j)}, {v(T+j)}")
    stamp(3); stamp(4)
    e("s_cmp_lt_u32 s2, 256\ns_cbranch_scc1 k3_z2\nv_mov_b32 v6, v1\ns_branch k3_st\nk3_z2:")
    for m in range(2):
        e(f"v_mov_b32 {v(F+2*m)}, 0\nv_mov_b32 {v(F+2*m+1)}, 0")
        for i in range(36): e(f"v_add_f32 {v(F+2*m)}, {v(F+2*m)}, {v(g.acc(m,0)+i)}\nv_fmac_f32 {v(F+2*m+1)}, {v(g.acc(m,0)+i)}, {v(g.acc(m,0)+i)}")
    xred([F,F+1,F+2,F+3],[F+4,F+5,F+6,F+7])
    e(f"s_lshl_b32 s48, s31, 14")
    for m in range(2): e(f"buffer_store_dwordx2 {v(F+2*m,2)}, v7, s[56:59], s48 offen offset:{128*m} sc1")
    e("v_lshrrev_b32 v15, 4, v0\nv_lshl_add_u32 v15, v15, 16, v7")
    e("v_bfe_u32 v4, v0, 2, 2\nv_lshlrev_b32 v6, 8, v4\nv_lshrrev_b32 v4, 4, v0\nv_lshl_add_u32 v6, v4, 6, v6\nv_and_b32 v4, 3, v0\nv_lshl_add_u32 v6, v4, 4, v6\ns_setprio 0\ns_waitcnt vmcnt(0)\nk3_poll:")
    for m in range(2):
        for c in range(4): e(f"s_mov_b32 s48, {16384*c}\nbuffer_load_dwordx2 {v(F+8*m+2*c,2)}, v15, s[56:59], s48 offen offset:{128*m} sc1")
    e(f"s_waitcnt vmcnt(0)\nv_max3_u32 v4, {v(F+1)}, {v(F+3)}, {v(F+5)}\nv_max3_u32 v4, v4, {v(F+7)}, {v(F+9)}\nv_max3_u32 v4, v4, {v(F+11)}, {v(F+13)}\nv_max_u32 v4, v4, {v(F+15)}\nv_cmp_eq_u32 vcc, -1, v4\ns_nop 4\ns_cbranch_vccnz k3_poll")
    stamp(4)
    for m in range(2):
        for c in range(1,4): e(f"v_add_f32 {v(F+8*m)}, {v(F+8*m)}, {v(F+8*m+2*c)}\nv_add_f32 {v(F+8*m+1)}, {v(F+8*m+1)}, {v(F+8*m+2*c+1)}")
    xred([F,F+1,F+8,F+9],[F+4,F+5,F+6,F+7])
    for m in range(2):
        fin(F+8*m,F+8*m+1,2304)
        for i in range(36): e(f"v_fma_f32 {v(g.acc(m,0)+i)}, {v(g.acc(m,0)+i)}, {v(F+8*m+1)}, {v(F+8*m)}")
    e("k3_st:")
    for t in range(9):
        for m in range(2):
            for h in range(2): e(f"v_cvt_pk_bf16_f32 {v(W+4*t+2*m+h)}, {v(g.acc(m,t)+2*h)}, {v(g.acc(m,t)+2*h+1)}")
        e(f"s_mov_b32 s48, {1024*t}\nbuffer_store_dwordx4 {v(W+4*t,4)}, v6, s[52:55], s48 offen")
    stamp(5); stampout(6); stampout(6,256)
    e("k3_end:\ns_endpgm")
    kend(n,512,256,g.lds+2048,F+24,g.na)
```

```python
from base import *
M45='N45' not in FL
class G:
    SC=['k5'] if M45 else []
    def __init__(g,tag,NT,nst,R,D,ldw,mode,KS=1,unroll=False):
        MT=2; g.tag,g.MT,g.NT,g.nst,g.R,g.D,g.ldw,g.mode,g.KS=tag,MT,NT,nst,R,D,ldw,mode,KS
        g.BK=64*KS; g.RB=NT*32; g.SB=g.BK*g.RB; g.WB=g.SB//4; g.nW=(g.WB+1023)//1024; g.nA=4
        g.ACC=20; g.WF=20+MT*NT*4; g.FREE=g.WF+8*NT; g.spw=65536//g.SB; g.nwin=(R+g.spw-1)//g.spw
        g.lds=R*g.SB; g.na=R*g.nA*4; g.cnt=0 if unroll else (nst-2)//R; g.Q=[]
        assert g.nwin<=3 and g.nW<=6
    def acc(g,m,t): return g.ACC+(m*g.NT+t)*4
    def soff(g): return f"s_add_u32 s64, s65, s66\ns_mul_i32 s45, s64, {4096*g.KS}\ns_mul_i32 s44, s64, {g.SB if g.mode=='lin' else g.BK*g.ldw}"
    def setup(g,mul,add=None):
        S=g.SBK=9 if g.nst%9==0 else 8
        if 'S16' in FL: S=g.SBK=2*S if g.nst>9 else S
        x=2 if S>9 else 1
        e(f"s_lshr_b32 s64, s2, 3\ns_and_b32 s66, s64, 7\ns_lshr_b32 s64, s64, 3\ns_mul_i32 s64, s64, {mul}\ns_add_u32 s66, s66, s64\ns_mul_i32 s66, s66, {x if 'ROT' in FL else 0}\ns_cmp_ge_u32 s66, {S}\ns_cselect_b32 s64, {S}, 0\ns_sub_u32 s66, s66, s64\ns_mov_b32 s65, 0\ns_mov_b32 s67, 0\n"+g.soff())
        if 'C1' in FL: e(cpf("a0"))
        e("v_and_b32 v0, 63, v0\nv_lshlrev_b32 v1, 4, v0")
        e(f"s_mul_i32 s46, s3, {g.WB}")
        if g.KS==2: e("s_lshr_b32 s51, s3, 1\ns_mul_i32 s48, s51, 5120\nv_add_u32 v16, s48, v1\nv_xor_b32 v17, 0x400, v16")
        if g.NT==12: e("s_lshl_b32 s48, s50, 10\nv_add_u32 v16, s48, v1\nv_xor_b32 v17, 0x400, v16\ns_mul_i32 s49, s51, 12")
        cpr=g.RB//16
        for i in range(g.nW):
            d=2+i
            if g.mode=='lin': e(f"s_add_u32 s48, s46, {i*1024}\nv_add_u32 {v(d)}, s48, v1")
            else:
                mg=(65536+cpr-1)//cpr
                assert all((c*mg)>>16==c//cpr for c in range(g.BK*cpr+64))
                e(f"s_lshr_b32 s48, s46, 4\ns_add_u32 s48, s48, {i*64}\nv_add_u32 v14, s48, v0\nv_mul_u32_u24 v15, {mg}, v14\nv_lshrrev_b32 v15, 16, v15")
                e(f"v_mul_u32_u24 {v(d)}, {cpr}, v15\nv_sub_u32 v14, v14, {v(d)}")
                if g.NT==6: e(f"v_bfe_u32 {v(d)}, v15, 2, 1\nv_lshlrev_b32 {v(d)}, 1, {v(d)}\nv_xor_b32 v14, v14, {v(d)}")
                if g.NT==12: e(f"v_and_b32 {v(d)}, 6, v15\nv_xor_b32 v14, v14, {v(d)}\nv_add_u32 v14, s49, v14\nv_subrev_u32 {v(d)}, 24, v14\nv_min_u32 v14, v14, {v(d)}")
                e(f"v_mul_u32_u24 {v(d)}, {g.ldw}, v15\nv_lshl_add_u32 {v(d)}, v14, 4, {v(d)}")
    def setup2(g):
        if g.mode=='lin':
            e("v_lshrrev_b32 v14, 5, v0\nv_lshlrev_b32 v8, 9, v14\nv_and_b32 v14, 3, v0\nv_lshl_add_u32 v8, v14, 6, v8\nv_bfe_u32 v14, v0, 2, 2\nv_lshl_add_u32 v8, v14, 4, v8\nv_bfe_u32 v14, v0, 4, 1\nv_lshl_add_u32 v8, v14, 3, v8")
        else:
            e(f"v_lshrrev_b32 v14, 2, v0\nv_mul_u32_u24 v8, {g.RB}, v14\nv_and_b32 v14, 3, v0\nv_lshl_add_u32 v8, v14, 3, v8")
        if g.KS==2: e(f"s_mul_i32 s48, s51, {64*g.RB}\nv_add_u32 v8, s48, v8")
        if g.NT==6:
            e("v_bfe_u32 v14, v0, 4, 1\nv_lshlrev_b32 v14, 5, v14\nv_add_u32 v11, 32, v8\nv_sub_u32 v11, v11, v14\nv_add_u32 v8, v8, v14")
        if g.NT==12:
            for q in range(4):
                e(f"v_bfe_u32 v14, v0, 3, 2\nv_xor_b32 v14, {q}, v14\nv_lshl_add_u32 {v(g.FREE+q)}, v14, 5, v8")
                for w in range(1,g.nwin): e(f"v_add_u32 {v(g.FREE+4*w+q)}, {w*g.spw*g.SB}, {v(g.FREE+q)}")
            return
        for w in range(1,g.nwin):
            e(f"v_add_u32 {v(8+w)}, {w*g.spw*g.SB}, v8")
            if g.NT==6: e(f"v_add_u32 {v(11+w)}, {w*g.spw*g.SB}, v11")
    def memops(g,st,lp=0):
        slot=st%g.R; A=[]; W=[]
        for i in range(4):
            ad,off=("v1",1024*i) if g.KS==1 and g.NT!=12 else (v(16+i%2),2048*(i//2))
            A.append(f"buffer_load_dwordx4 {a_((slot*4+i)*4,4)}, {ad}, s[16:19], s45 offen offset:{off}")
        S=g.SBK
        A[-1]+=f"\ns_add_u32 s66, s66, 1\ns_cmp_eq_u32 s66, {S}\ns_cselect_b32 s66, 0, s66\ns_add_u32 s67, s67, 1\ns_cmp_eq_u32 s67, {S}\ns_cselect_b32 s67, 0, s67\ns_cselect_b32 s64, {S}, 0\ns_add_u32 s65, s65, s64\n"+g.soff()
        for i in range(g.nW):
            half=(i+1)*1024>g.WB
            W.append(f"s_add_u32 m0, s46, {slot*g.SB+i*1024}\n"+("s_mov_b32 exec_hi, 0\n" if half else "s_nop 0\n")+f"buffer_load_dwordx4 {v(2+i)}, s[12:15], s44 offen lds"+("\ns_mov_b32 exec_hi, -1" if half else ""))
        if 'WRAP' in FL: A[-1]+='\ns_and_b32 s45, s45, 0x7fff'; W[-1]+='\ns_and_b32 s44, s44, 0x1ffff'
        if 'NT' in FL: A=[x.replace(' offen',' offen nt') if 0 else x.split('\n')[0]+' nt\n'+'\n'.join(x.split('\n')[1:]) for x in A]; W=[x.replace(' lds',' nt lds') for x in W]
        if 'SC' in FL: A=[x.split('\n')[0]+' sc1\n'+'\n'.join(x.split('\n')[1:]) for x in A]; W=[x.replace(' lds',' sc1 lds') for x in W]
        if g.tag in g.SC: A=[x.split('\n')[0]+' sc1\n'+'\n'.join(x.split('\n')[1:]) for x in A]
        if lp and 'NOA' in FL: A=[]
        if lp and 'NOW' in FL: W=[]
        return [(o,st) for o in W+A]
    def op(g,o): e(o[0]); g.Q.append(o[1])
    def wait(g,st):
        idx=[i for i,x in enumerate(g.Q) if x<=st]
        if idx: e(f"s_waitcnt vmcnt({min(63,len(g.Q)-1-idx[-1])})"); del g.Q[:idx[-1]+1]
    def reads(g,slot,j,buf):
        r=[]; w=slot//g.spw; b=(slot%g.spw)*g.SB+j*32*g.RB
        for t in range(g.NT):
            for u in range(2):
                if g.mode=='lin': ad,off=8+w,b+t*1024+u*256
                elif g.NT==6: ad,off=(8 if t%2==0 else 11)+w,b+u*16*g.RB+(t&~1)*32
                elif g.NT==12: ad,off=g.FREE+4*w+t%4,b+u*16*g.RB+(t&~3)*32
                else: ad,off=8+w,b+u*16*g.RB+t*32
                r.append(f"ds_read_b64_tr_b16 {v(g.WF+buf*4*g.NT+4*t+2*u,2)}, {v(ad)} offset:{off}")
        return r
    def prologue(g,mid=None):
        stamp(0)
        if mid:
            for st in range(g.D-1):
                e(f"s_mov_b32 s44, {st*g.BK*g.ldw}")
                for o in g.memops(st)[:g.nW]: e(o[0])
            mid()
        for st in range(g.D-1):
            for o in g.memops(st)[g.nW if mid else 0:]: g.op(o)
        g.setup2()
        for i in range(g.MT*g.NT*4): e(f"v_mov_b32 {v(g.ACC+i)}, 0")
        g.wait(0); e("s_barrier"); stamp(1); e('s_waitcnt lgkmcnt(0)' if 'T' in FL else '')
        for r in g.reads(0,0,0): e(r)
        g.mo=g.memops(g.D-1); hh=(len(g.mo)+1)//2
        for o in g.mo[:hh]: g.op(o)
        g.mo=g.mo[hh:]
    def stage(g,i,tail):
        MT,NT,R=g.MT,g.NT,g.R; h=(NT+1)//2; nm=MT*NT
        for j in range(2):
            rd=g.reads(i%R,1,1) if j==0 else g.reads((i+1)%R,0,0)
            if j==0: mo=g.mo; g.mo=[]
            else:
                mo=[]
                if tail and i==g.nst-1: rd=[]
                else:
                    g.wait(i+1); e("s_barrier")
                    if not tail or i+g.D<g.nst:
                        mo=g.memops(i+g.D,1); hh=(len(mo)+1)//2; g.mo=mo[hh:]; mo=mo[:hh]
            if 'NORD' in FL: rd=[]
            issued=0; k=0; gap=max(1,nm//max(1,len(mo)))
            for t in range(NT):
                if t==0: e(f"s_waitcnt lgkmcnt({min(15,2*(NT-h))})")
                if t==h: e(f"s_waitcnt lgkmcnt({min(15,issued)})")
                for m in range(MT):
                    if not "NOMF" in FL: e(f"v_mfma_f32_16x16x32_bf16 {v(g.acc(m,t),4)}, {v(g.WF+j*4*NT+4*t,4)}, {a_(((i%R)*4+j*MT+m)*4,4)}, {v(g.acc(m,t),4)}")
                    k+=1
                    want=min(len(rd),(len(rd)*k+nm-3)//(nm-2))
                    while issued<want: e(rd[issued]); issued+=1
                    if mo and k%gap==1%gap: g.op(mo.pop(0))
            for o in mo: g.op(o)
    def loop(g,late=[],lst=None):
        R=g.R
        if 'C2' in FL and g.tag!='k5': late=[cpf(a_(g.na),"k5_body" if M45 and g.tag=='k4' else f"k{int(g.tag[1])+1}_kernel",True)]+late; g.na+=4
        if g.cnt:
            e(f"s_mov_b32 s47, {g.cnt}\n{g.tag}_loop:")
            for i in range(R): g.stage(i,False)
            e(f"s_sub_u32 s47, s47, 1\ns_cmp_lg_u32 s47, 0\ns_cbranch_scc1 {g.tag}_loop")
            sh=(g.cnt-1)*R; g.Q=[x+sh for x in g.Q]; g.mo=[(o,x+sh) for o,x in g.mo]
        if lst is None: lst=g.cnt*R
        for i in range(g.cnt*R,g.nst):
            if i==lst: g.mo=g.mo+[(o,999) for o in late]
            g.stage(i,True)
        stamp(2)
        if g.KS==2:
            e("s_mul_i32 s48, s3, 6144\nv_add_u32 v16, s48, v1\ns_xor_b32 s48, s3, 2\ns_mul_i32 s48, s48, 6144\nv_add_u32 v17, s48, v1")
            g.wait(998); e("s_barrier\ns_nop 4")
            for t in range(6): e(f"ds_write_b128 v16, {v(g.acc(1,t),4)} offset:{1024*t}")
            e("s_waitcnt lgkmcnt(0)\ns_barrier")
            for t in range(6): e(f"ds_read_b128 {v(g.acc(1,t),4)}, v17 offset:{1024*t}")
            e("s_waitcnt vmcnt(0) lgkmcnt(0)")
            for i in range(24): e(f"v_add_f32 {v(g.ACC+i)}, {v(g.ACC+i)}, {v(g.ACC+24+i)}")
        elif g.NT!=12: e("s_waitcnt vmcnt(0) lgkmcnt(0)\ns_nop 7")
def map_8x3():
    e("s_and_b32 s32, s2, 7\ns_lshr_b32 s33, s2, 3\ns_and_b32 s30, s33, 7\ns_lshr_b32 s31, s33, 3\ns_lshr_b32 s33, s32, 1\ns_lshl_b32 s33, s33, 3\ns_add_u32 s30, s30, s33\ns_and_b32 s32, s32, 1\ns_mul_i32 s32, s32, 3\ns_add_u32 s31, s31, s32")
def map_8x4():
    e("s_and_b32 s32, s2, 7\ns_bfe_u32 s33, s2, 0x50003\ns_and_b32 s30, s33, 7\ns_lshr_b32 s31, s33, 3\ns_and_b32 s33, s32, 1\ns_lshl_b32 s33, s33, 3\ns_add_u32 s30, s30, s33\ns_lshr_b32 s32, s32, 1\ns_lshl_b32 s32, s32, 2\ns_add_u32 s31, s31, s32")
def modvec(d,seg,nt):
    return [f"s_mov_b32 s48, {seg*2304}\nbuffer_load_dwordx4 {v(d+4*t,4)}, v19, s[24:27], s48 offen offset:{64*t}" for t in range(nt)]

def k2():
    n="k2_kernel"; kstart(n); g=G("k2",12,16,*((6,5) if 'R6' in FL else (5,4)),1152,'str'); F=g.WF+24
    e("s_cmp_ge_u32 s2, 240\ns_cbranch_scc1 k2_end")
    ldptr([(4,X),(6,WO),(8,WIN),(10,WS)]); waveid(3,1)
    e("s_cmp_ge_u32 s2, 192\ns_cbranch_scc1 k2_uv")
    e("s_bfe_u32 s52, s2, 0x20001\ns_and_b32 s50, s52, 1\ns_lshr_b32 s51, s52, 1\ns_and_b32 s30, s2, 1\ns_lshl_b32 s30, s30, 3\ns_bfe_u32 s31, s2, 0x30003\ns_add_u32 s30, s30, s31\ns_lshr_b32 s53, s2, 6")
    e("s_lshl_b32 s33, s30, 2\ns_add_u32 s33, s33, s3\ns_lshl_b32 s34, s33, 1\ns_add_u32 s34, s34, s50\ns_lshl_b32 s31, s53, 1\ns_add_u32 s31, s31, s51\ns_mul_i32 s35, s53, 384\ns_mul_i32 s36, s52, 1179648\ns_add_u32 s35, s35, s36\ns_sub_u32 s36, 4718592, s35")
    e("s_lshl_b32 s37, s33, 18\ns_lshl_b32 s38, s52, 16\ns_add_u32 s37, s37, s38\ns_mul_i32 s38, s34, 18432\ns_mul_i32 s39, s31, 192\ns_add_u32 s38, s38, s39\ns_lshl_b32 s39, s39, 1")
    e("s_mul_i32 s40, s33, 3\ns_add_u32 s40, s40, s53\ns_mul_i32 s41, s40, 36864\ns_lshl_b32 s40, s40, 9\ns_waitcnt lgkmcnt(0)")
    srd(12,6,0,"s36",35); srd(16,10,O,65536,37); srd(20,4,0,15*1152+192,38); srd(24,10,MOD,13824,39); srd(56,10,PB,36864,41); srd(60,10,FG,512,40)
    g.setup(3)
    e("v_and_b32 v18, 15, v0\nv_mul_u32_u24 v18, 1152, v18\nv_lshrrev_b32 v19, 4, v0\nv_lshl_add_u32 v18, v19, 3, v18\nv_lshlrev_b32 v19, 4, v19")
    g.prologue(); g.loop(); e("s_nop 7\ns_nop 3")
    QD=lambda j: g.ACC+48*(j&1)+24*(j>>1)
    for j in (2,1,3):
        for i in range(12): e(f"v_cvt_pk_bf16_f32 {v(QD(j)+i)}, {v(QD(j)+2*i)}, {v(QD(j)+2*i+1)}")
        e(f"s_xor_b32 s48, s52, {j}\ns_mul_i32 s48, s48, 9216\ns_add_u32 s48, s48, {3072*(j-1)}")
        for p in range(3): e(f"buffer_store_dwordx4 {v(QD(j)+4*p,4)}, v1, s[56:59], s48 offen offset:{1024*p} sc1")
    e("v_lshlrev_b32 v2, 7, v0\nv_lshlrev_b32 v3, 9, v0\ns_lshl_b32 s48, s52, 7\nv_add_u32 v3, s48, v3\nv_mov_b32 v4, 0\ns_mul_i32 s49, s52, 9216\ns_waitcnt vmcnt(0)\nbuffer_store_dword v4, v3, s[60:63], 0 offen sc1")
    for x in [f"buffer_load_dwordx2 {v(F+2*t,2)}, v18, s[20:23], 0 offen offset:{32*t}" for t in range(6)]+modvec(F+12,2,6)+modvec(F+36,4,6): e(x)
    stamp(3)
    e("k2_poll:\nbuffer_load_dword v4, v2, s[60:63], 0 offen sc1\ns_waitcnt vmcnt(0)\nv_cmp_ne_u32 vcc, 0, v4\ns_nop 1\ns_cbranch_vccz k2_go\ns_sleep 1\ns_branch k2_poll\nk2_go:")
    stamp(4)
    for j in (1,2,3):
        e(f"s_add_u32 s48, s49, {3072*(j-1)}")
        for p in range(3): e(f"buffer_load_dwordx4 {v(QD(j)+12+4*p,4)}, v1, s[56:59], s48 offen offset:{1024*p} sc1")
    for j in (1,2,3):
        e(f"s_waitcnt vmcnt({9-3*j})")
        for i in range(12):
            unpack(4,5,QD(j)+12+i); e(f"v_add_f32 {v(g.ACC+2*i)}, {v(g.ACC+2*i)}, v4\nv_add_f32 {v(g.ACC+2*i+1)}, {v(g.ACC+2*i+1)}, v5")
    stamp(5)
    e("s_mul_i32 s35, s34, 6\ns_add_u32 s35, s35, s31\ns_mul_i32 s35, s35, 3072\ns_lshr_b32 s36, s34, 1\ns_mul_i32 s36, s36, 36864\ns_mul_i32 s37, s31, 6144\ns_add_u32 s36, s36, s37\ns_and_b32 s37, s34, 1\ns_lshl_b32 s37, s37, 10\ns_add_u32 s36, s36, s37\ns_lshl_b32 s37, s31, 14\ns_lshl_b32 s38, s34, 7\ns_add_u32 s37, s37, s38")
    srd(12,10,X1,3072,35); srd(16,10,XC,5120,36); srd(20,10,ST2,128,37)
    e("v_mov_b32 v2, 0\nv_mov_b32 v3, 0"); W=g.WF
    for t in range(6):
        A=g.acc(0,t)
        for h in range(2):
            unpack(4,5,F+2*t+h)
            e(f"v_fmac_f32 v4, {v(A+2*h)}, {v(F+12+4*t+2*h)}\nv_fmac_f32 v5, {v(A+2*h+1)}, {v(F+13+4*t+2*h)}\nv_cvt_pk_bf16_f32 {v(W+2*t+h)}, v4, v5")
            unpack(4,5,W+2*t+h)
            e(f"v_add_f32 v2, v2, v4\nv_fmac_f32 v3, v4, v4\nv_add_f32 v2, v2, v5\nv_fmac_f32 v3, v5, v5")
            e(f"v_mul_f32 v4, v4, {v(F+36+4*t+2*h)}\nv_mul_f32 v5, v5, {v(F+37+4*t+2*h)}\nv_cvt_pk_bf16_f32 {v(W+12+2*t+h)}, v4, v5")
        if t%2:
            p=t//2
            e(f"s_mov_b32 s48, {2048*p}\nbuffer_store_dwordx4 {v(W+4*p,4)}, v1, s[12:15], 0 offen offset:{1024*p}\nbuffer_store_dwordx4 {v(W+12+4*p,4)}, v1, s[16:19], s48 offen")
    xred([2,3],[4,5])
    e("v_lshlrev_b32 v4, 3, v0\nbuffer_store_dwordx2 v[2:3], v4, s[20:23], 0 offen")
    stamp(6); stampout(7); stampout(7,101,2); e("s_endpgm")
    e("k2_uv:\ns_sub_u32 s30, s2, 192\ns_mul_i32 s30, s30, 3\ns_add_u32 s41, s30, 3\ns_waitcnt lgkmcnt(0)")
    srd(16,10,MOD,13824); srd(20,10,UV,65536)
    e("v_and_b32 v6, 0xfc, v0")
    for q,seg in enumerate((4,3)):
        for i in range(9): e(f"s_mov_b32 s48, {seg*2304}\nbuffer_load_dword {v(60+9*q+i)}, v6, s[16:19], s48 offen offset:{256*i}")
    e("k2_uvl:\ns_lshl_b32 s31, s30, 6\ns_sub_u32 s32, 5308416, s31")
    srd(12,8,0,"s32",31)
    gemv_loads(12,9216); gemv(2,12,9216,"k2")
    assert all((c*3641)>>19==c//144 for c in range(4608))
    e("s_lshl_b32 s31, s30, 5\nv_and_b32 v4, 31, v0\nv_add_u32 v4, s31, v4\nv_mul_u32_u24 v5, 3641, v4\nv_lshrrev_b32 v5, 19, v5\nv_mul_u32_u24 v5, 1472, v5\nv_lshl_add_u32 v4, v4, 2, v5\nv_bfe_u32 v5, v0, 5, 1\nv_mul_u32_u24 v5, 576, v5\nv_add_u32 v4, v4, v5")
    e("buffer_store_dword v2, v4, s[20:23], 0 offen\ns_waitcnt vmcnt(0)\ns_barrier\ns_add_u32 s30, s30, 1\ns_cmp_lt_u32 s30, s41\ns_cbranch_scc1 k2_uvl")
    e("k2_end:\ns_endpgm")
    kend(n,240,256,g.lds,g.FREE+12,g.na)

def k5():
    n="k5_kernel"; g=G("k5",6,18,5,4,1152,'str',2); F=g.FREE; mid=None
    if M45:
        fl="s_waitcnt vmcnt(0)\nbuffer_store_dword v13, v12, s[60:63], 0 offen sc1"
        e("k5_body:\nv_lshlrev_b32 v12, 7, v0\nv_mov_b32 v13, 0\ns_cmp_lt_u32 s2, 192\ns_cbranch_scc1 k5_go\n"+fl+"\ns_endpgm\nk5_go:"); SO[0]=4
        ldptr([(4,OUT),(6,WOUT)]); e("s_barrier")
        def mid():
            e("s_lshl_b32 s41, s33, 11"); srd(56,10,FG+768*128,2048,41); e(fl); stamp(4)
            e("k5_poll:\nbuffer_load_dword v13, v12, s[56:59], 0 offen sc1\ns_waitcnt vmcnt(0)\nv_cmp_ne_u32 vcc, 0, v13\ns_nop 1\ns_cbranch_vccz k5_rdy\ns_sleep 1\ns_branch k5_poll\nk5_rdy:"); stamp(5)
    else:
        kstart(n); e("s_cmp_ge_u32 s2, 192\ns_cbranch_scc1 k5_end")
        ldptr([(4,OUT),(6,WOUT),(10,WS)]); waveid(3,1)
    map_8x3()
    e("s_and_b32 s33, s3, 1\ns_lshl_b32 s34, s30, 1\ns_add_u32 s33, s33, s34\ns_lshl_b32 s34, s33, 1\ns_lshr_b32 s35, s3, 1\ns_add_u32 s34, s34, s35\ns_mul_i32 s35, s31, 192\ns_sub_u32 s36, 2654208, s35\ns_mul_i32 s37, s33, 147456\ns_mul_i32 s38, s34, 18432\ns_add_u32 s38, s38, s35\ns_lshl_b32 s39, s35, 1\ns_mul_i32 s40, s34, 6\ns_add_u32 s40, s40, s31\ns_mul_i32 s40, s40, 3072\ns_waitcnt lgkmcnt(0)")
    srd(12,6,0,"s36",35); srd(16,10,Y,147456,37); srd(20,4,0,15*1152+192,38); srd(24,10,MOD,13824,39); srd(52,10,X1,3072,40)
    g.setup(3)
    e("v_and_b32 v18, 15, v0\nv_mul_u32_u24 v18, 1152, v18\nv_lshrrev_b32 v19, 4, v0\nv_lshl_add_u32 v18, v19, 3, v18\nv_lshlrev_b32 v19, 4, v19")
    g.prologue(mid); g.loop([f"buffer_load_dwordx4 {v(F+4*p,4)}, v1, s[52:55], 0 offen offset:{1024*p}" for p in range(3)]+modvec(F+12,5,6))
    for t in range(6):
        A=g.acc(0,t)
        for h in range(2):
            unpack(4,5,F+2*t+h)
            e(f"v_fmac_f32 v4, {v(A+2*h)}, {v(F+12+4*t+2*h)}\nv_fmac_f32 v5, {v(A+2*h+1)}, {v(F+13+4*t+2*h)}\nv_cvt_pk_bf16_f32 {v(g.WF+2*t+h)}, v4, v5")
        e(f"buffer_store_dwordx2 {v(g.WF+2*t,2)}, v18, s[20:23], 0 offen offset:{32*t}")
    stamp(3); stampout(10 if M45 else 4)
    e(("k4_end:\n" if M45 else "")+"k5_end:\ns_endpgm")
    if not M45: kend(n,192,256,g.lds,F+36,g.na)

def k4():
    n="k4_kernel"; kstart(n); g=G("k4",9,32,6,5,0,'lin'); F=g.FREE
    e("s_cmp_ge_u32 s2, 256\ns_cbranch_scc1 k4_end")
    ldptr([(4,BSP),(10,WS)]); waveid(3,1)
    map_8x4()
    e("s_lshl_b32 s34, s30, 2\ns_add_u32 s34, s34, s3\ns_mul_i32 s35, s31, 589824\ns_lshl_b32 s37, s34, 17\ns_mul_i32 s38, s34, 9216\ns_add_u32 s38, s38, s35\ns_lshl_b32 s39, s34, 6")
    e("s_mul_i32 s40, s34, 147456\ns_mul_i32 s41, s31, 9\ns_lshr_b32 s41, s41, 1\ns_lshl_b32 s41, s41, 11\ns_add_u32 s40, s40, s41\ns_waitcnt lgkmcnt(0)")
    srd(12,10,Z2,589824,35); srd(16,10,WSP,131072,37); srd(20,10,Z1,9216,38); srd(24,4,0,64,39); srd(52,10,Y,10240,40)
    e("s_lshl_b32 s41, s34, 4\ns_add_u32 s41, s41, s31\ns_lshl_b32 s41, s41, 7"); srd(60,10,FG+768*128,4,41)
    g.setup(2)
    e("v_and_b32 v18, 15, v0\nv_lshlrev_b32 v18, 1, v18")
    g.prologue(); g.loop([f"buffer_load_ushort {v(F+36+m)}, v18, s[24:27], 0 offen offset:{32*m}" for m in range(2)]+[f"s_mov_b32 s48, {1024*t}\nbuffer_load_dwordx4 {v(F+4*t,4)}, v1, s[20:23], s48 offen" for t in range(9)])
    W=g.WF
    for m in range(2):
        e(f"v_lshlrev_b32 {v(F+36+m)}, 16, {v(F+36+m)}")
        for t in range(9):
            A=g.acc(m,t)
            for h in range(2):
                unpack(4,5,F+4*t+2*m+h)
                e(f"v_add_f32 v6, {v(A+2*h)}, {v(F+36+m)}\nv_add_f32 v7, {v(A+2*h+1)}, {v(F+36+m)}\nv_mul_f32 v4, v4, v6\nv_mul_f32 v5, v5, v7\nv_cvt_pk_bf16_f32 {v(W+20*m+2*t+h)}, v4, v5")
    e("s_bitcmp1_b32 s31, 0\ns_cbranch_scc1 k4_odd")
    for par in range(2):
        for m in range(2):
            for p in range(4): e(f"s_mov_b32 s48, {2048*(p+par)}\nbuffer_store_dwordx4 {v(W+20*m+4*p+2*par,4)}, v1, s[52:55], s48 offen offset:{1024*m}")
            e(f"s_mov_b32 s48, {0 if par else 8192}\nbuffer_store_dwordx2 {v(W+20*m+(0 if par else 16),2)}, v1, s[52:55], s48 offen offset:{1024*m+8*par}"+(" sc1" if M45 else ""))
        stamp(3)
        if M45:
            if par==0: e("s_branch k5_body\nk4_odd:")
            continue
        stampout(4)
        e("s_endpgm\nk4_odd:" if par==0 else "k4_end:\ns_endpgm")
    kend(n,256,256,122880 if M45 else g.lds,F+38,g.na)

def k3():
    n="k3_kernel"; kstart(n); g=G("k3",9,9,4,3,9216,'str',1,True); F=g.FREE; W=g.WF
    e("s_cmp_ge_u32 s2, 512\ns_cbranch_scc1 k3_end")
    ldptr([(6,WIN),(10,WS)]); waveid(3,1)
    map_8x4()
    e("s_cmp_lt_u32 s2, 256\ns_cselect_b32 s42, 16, 0\ns_cbranch_scc0 k3_lo\ns_setprio 2\nk3_lo:\ns_add_u32 s43, s42, s31")
    e("s_lshl_b32 s34, s30, 2\ns_add_u32 s34, s34, s3\ns_mul_i32 s35, s43, 288\ns_sub_u32 s36, 5308416, s35\ns_mul_i32 s37, s34, 36864\ns_lshl_b32 s38, s34, 8\ns_lshl_b32 s39, s43, 11")
    e(f"s_mul_i32 s40, s43, 589824\ns_mul_i32 s41, s34, 9216\ns_add_u32 s40, s40, s41\ns_waitcnt lgkmcnt(0)")
    assert Z2==Z1+16*589824
    srd(12,6,0,"s36",35); srd(16,10,XC,36864,37); srd(20,10,ST2,6*16384,38); srd(24,10,UV,1152,39); srd(52,10,Z1,9216,40)
    srd(56,10,ST3,16*16384,38)
    g.setup(1)
    e("v_and_b32 v7, 15, v0\nv_lshlrev_b32 v7, 3, v7")
    late=[f"s_mov_b32 s48, {16384*c}\nbuffer_load_dwordx2 {v(F+12*m+2*c,2)}, v7, s[20:23], s48 offen offset:{128*m}" for m in range(2) for c in range(6)]
    late+=[f"s_mov_b32 m0, {g.lds}\ns_nop 0\nbuffer_load_dwordx4 v1, s[24:27], 0 offen offset:{1024*q} lds" for q in range(2)]
    g.prologue(); g.loop(late,6)
    e(f"v_lshrrev_b32 v15, 4, v0\nv_lshlrev_b32 v15, 4, v15\nv_add_u32 v15, {g.lds}, v15")
    for q in range(2):
        for t in range(9): e(f"ds_read_b128 {v(W+36*q+4*t,4)}, v15 offset:{576*q+64*t}")
    def fin(sm,sq,n):
        e(f"v_mul_f32 {v(sm)}, {f2h(-1/n)}, {v(sm)}\nv_mov_b32 v4, {f2h(1e-5)}\nv_fmamk_f32 {v(sq)}, {v(sq)}, {f2h(1/n)}, v4\nv_fma_f32 {v(sq)}, -{v(sm)}, {v(sm)}, {v(sq)}\nv_max_f32 {v(sq)}, {v(sq)}, v4\nv_rsq_f32 {v(sq)}, {v(sq)}\ns_nop 0\nv_mul_f32 {v(sm)}, {v(sm)}, {v(sq)}")
    for m in range(2):
        for c in range(1,6): e(f"v_add_f32 {v(F+12*m)}, {v(F+12*m)}, {v(F+12*m+2*c)}\nv_add_f32 {v(F+12*m+1)}, {v(F+12*m+1)}, {v(F+12*m+2*c+1)}")
        fin(F+12*m,F+12*m+1,576)
    k0=-2*0.7978845608028654*1.4426950408889634
    e(f"s_waitcnt lgkmcnt(0)\nv_mov_b32 v14, {f2h(k0)}")
    T=F+2
    for m in range(2):
        for t in range(9):
            A=g.acc(m,t)
            for j in range(4): e(f"v_fma_f32 {v(T+j)}, {v(F+12*m)}, {v(W+4*t+j)}, {v(W+36+4*t+j)}")
            for j in range(4): e(f"v_fma_f32 {v(A+j)}, {v(A+j)}, {v(F+12*m+1)}, {v(T+j)}")
            for j in range(4): e(f"v_mul_f32 {v(T+j)}, {v(A+j)}, {v(A+j)}")
            for j in range(4): e(f"v_fmamk_f32 {v(T+j)}, {v(T+j)}, {f2h(k0*0.044715)}, v14")
            for j in range(4): e(f"v_mul_f32 {v(T+j)}, {v(T+j)}, {v(A+j)}")
            for j in range(4): e(f"v_exp_f32 {v(T+j)}, {v(T+j)}")
            for j in range(4): e(f"v_add_f32 {v(T+j)}, 1.0, {v(T+j)}")
            for j in range(4): e(f"v_rcp_f32 {v(T+j)}, {v(T+j)}")
            for j in range(4): e(f"v_mul_f32 {v(A+j)}, {v(A+j)}, {v(T+j)}")
    stamp(3); stamp(4)
    e("s_cmp_lt_u32 s2, 256\ns_cbranch_scc1 k3_z2\nv_mov_b32 v6, v1\ns_branch k3_st\nk3_z2:")
    for m in range(2):
        e(f"v_mov_b32 {v(F+2*m)}, 0\nv_mov_b32 {v(F+2*m+1)}, 0")
        for i in range(36): e(f"v_add_f32 {v(F+2*m)}, {v(F+2*m)}, {v(g.acc(m,0)+i)}\nv_fmac_f32 {v(F+2*m+1)}, {v(g.acc(m,0)+i)}, {v(g.acc(m,0)+i)}")
    xred([F,F+1,F+2,F+3],[F+4,F+5,F+6,F+7])
    e(f"s_lshl_b32 s48, s31, 14")
    for m in range(2): e(f"buffer_store_dwordx2 {v(F+2*m,2)}, v7, s[56:59], s48 offen offset:{128*m} sc1")
    e("v_lshrrev_b32 v15, 4, v0\nv_lshl_add_u32 v15, v15, 16, v7")
    e("v_bfe_u32 v4, v0, 2, 2\nv_lshlrev_b32 v6, 8, v4\nv_lshrrev_b32 v4, 4, v0\nv_lshl_add_u32 v6, v4, 6, v6\nv_and_b32 v4, 3, v0\nv_lshl_add_u32 v6, v4, 4, v6\ns_setprio 0\ns_waitcnt vmcnt(0)\nk3_poll:")
    for m in range(2):
        for c in range(4): e(f"s_mov_b32 s48, {16384*c}\nbuffer_load_dwordx2 {v(F+8*m+2*c,2)}, v15, s[56:59], s48 offen offset:{128*m} sc1")
    e(f"s_waitcnt vmcnt(0)\nv_max3_u32 v4, {v(F+1)}, {v(F+3)}, {v(F+5)}\nv_max3_u32 v4, v4, {v(F+7)}, {v(F+9)}\nv_max3_u32 v4, v4, {v(F+11)}, {v(F+13)}\nv_max_u32 v4, v4, {v(F+15)}\nv_cmp_eq_u32 vcc, -1, v4\ns_nop 4\ns_cbranch_vccnz k3_poll")
    stamp(4)
    for m in range(2):
        for c in range(1,4): e(f"v_add_f32 {v(F+8*m)}, {v(F+8*m)}, {v(F+8*m+2*c)}\nv_add_f32 {v(F+8*m+1)}, {v(F+8*m+1)}, {v(F+8*m+2*c+1)}")
    xred([F,F+1,F+8,F+9],[F+4,F+5,F+6,F+7])
    for m in range(2):
        fin(F+8*m,F+8*m+1,2304)
        for i in range(36): e(f"v_fma_f32 {v(g.acc(m,0)+i)}, {v(g.acc(m,0)+i)}, {v(F+8*m+1)}, {v(F+8*m)}")
    e("k3_st:")
    for t in range(9):
        for m in range(2):
            for h in range(2): e(f"v_cvt_pk_bf16_f32 {v(W+4*t+2*m+h)}, {v(g.acc(m,t)+2*h)}, {v(g.acc(m,t)+2*h+1)}")
        e(f"s_mov_b32 s48, {1024*t}\nbuffer_store_dwordx4 {v(W+4*t,4)}, v6, s[52:55], s48 offen")
    stamp(5); stampout(6); stampout(6,256)
    e("k3_end:\ns_endpgm")
    kend(n,512,256,g.lds+2048,F+24,g.na)
```
